```python
import torch

def _softmax(x, axis=-1):
    return torch.softmax(x, dim=axis)
def _gelu(x):
    return torch.nn.functional.gelu(x, approximate="tanh")
def _silu(x):
    return torch.nn.functional.silu(x)
def _sigmoid(x):
    return torch.sigmoid(x)
def _layernorm(x, axis=-1, eps=1e-5):
    m = x.mean(dim=axis, keepdim=True)
    v = x.var(dim=axis, keepdim=True, unbiased=False)
    return (x - m) / torch.sqrt(v + eps)
def _scatter_add(tgt, idx, src, axis=0):
    return tgt.clone().index_add_(axis, idx, src)
def _segment_sum(src, seg, n):
    out = torch.zeros((n,) + src.shape[1:], dtype=src.dtype)
    return out.index_add_(0, seg, src)
def _pad(x, pw):
    flat = tuple(v for pair in reversed(pw) for v in pair)
    return torch.nn.functional.pad(x, flat)

kernel_name = 'concat_heads__gqa_block_cached__gqa_block_cached__near_ridge'

def setup_inputs():

    _w = (lambda a: (lambda t: t.to(torch.bfloat16) if t.is_floating_point() else t)(torch.as_tensor(a)))
    def _A_setup():
        B, Sq, D = 16, 48, 512
        Hq, Hkv, Sk, Dh = 32, 8, 512, 128
        assert Hq % Hkv == 0, (Hq, Hkv)
        return {
            "x": _w((lambda *s: torch.randn(*s, dtype=torch.bfloat16) * 0.8)(B, Sq, D)),
            "k_cache": _w((lambda *s: torch.randn(*s, dtype=torch.bfloat16) * 0.8)(B, Hkv, Sk, Dh)),
            "v_cache": _w((lambda *s: torch.randn(*s, dtype=torch.bfloat16) * 0.05)(B, Hkv, Sk, Dh)),
            "wq": _w((lambda *s: torch.randn(*s, dtype=torch.bfloat16) * 0.8)(D, Hq * Dh) * (D ** -0.5)),
            "wo": _w((lambda *s: torch.randn(*s, dtype=torch.bfloat16) * 0.05)(Hq * Dh, D) * ((Hq * Dh) ** -0.5)),
        }
    _A_in = _A_setup()

    def _B_setup():
        B, Sq, D = 16, 48, 512
        Hq, Hkv, Sk, Dh = 32, 8, 512, 128
        assert Hq % Hkv == 0, (Hq, Hkv)
        return {
            "x": _w((lambda *s: torch.randn(*s, dtype=torch.bfloat16) * 0.8)(B, Sq, D)),
            "k_cache": _w((lambda *s: torch.randn(*s, dtype=torch.bfloat16) * 0.8)(B, Hkv, Sk, Dh)),
            "v_cache": _w((lambda *s: torch.randn(*s, dtype=torch.bfloat16) * 0.05)(B, Hkv, Sk, Dh)),
            "wq": _w((lambda *s: torch.randn(*s, dtype=torch.bfloat16) * 0.8)(D, Hq * Dh) * (D ** -0.5)),
            "wo": _w((lambda *s: torch.randn(*s, dtype=torch.bfloat16) * 0.05)(Hq * Dh, D) * ((Hq * Dh) ** -0.5)),
        }
    _B_in = _B_setup()

    return {
        "A_x": _A_in["x"],
        "A_k_cache": _A_in["k_cache"],
        "A_v_cache": _A_in["v_cache"],
        "A_wq": _A_in["wq"],
        "A_wo": _A_in["wo"],
        "B_x": _B_in["x"],
        "B_k_cache": _B_in["k_cache"],
        "B_v_cache": _B_in["v_cache"],
        "B_wq": _B_in["wq"],
        "B_wo": _B_in["wo"],
    }

def reference(A_x, A_k_cache, A_v_cache, A_wq, A_wo, B_x, B_k_cache, B_v_cache, B_wq, B_wo):
    def _A_ref(x, k_cache, v_cache, wq, wo):
        B, Sq, D = x.shape
        Hq, Dh = 32, 128
        Hkv = k_cache.shape[1]
        rep = Hq // Hkv
        q = (lambda x, *d: x.permute(*d))((x @ wq).reshape(B, Sq, Hq, Dh), 0, 2, 1, 3)
        k = (lambda x, n, axis: torch.repeat_interleave(x, n, dim=axis))(k_cache, rep, axis=1)
        v = (lambda x, n, axis: torch.repeat_interleave(x, n, dim=axis))(v_cache, rep, axis=1)
        scores = torch.einsum("bhqd,bhkd->bhqk", q, k) * (Dh ** -0.5)
        p = _softmax(scores, axis=-1)
        o = torch.einsum("bhqk,bhkd->bhqd", p, v)
        return (lambda x, *d: x.permute(*d))(o, 0, 2, 1, 3).reshape(B, Sq, Hq * Dh) @ wo

    def _B_ref(x, k_cache, v_cache, wq, wo):
        B, Sq, D = x.shape
        Hq, Dh = 32, 128
        Hkv = k_cache.shape[1]
        rep = Hq // Hkv
        q = (lambda x, *d: x.permute(*d))((x @ wq).reshape(B, Sq, Hq, Dh), 0, 2, 1, 3)
        k = (lambda x, n, axis: torch.repeat_interleave(x, n, dim=axis))(k_cache, rep, axis=1)
        v = (lambda x, n, axis: torch.repeat_interleave(x, n, dim=axis))(v_cache, rep, axis=1)
        scores = torch.einsum("bhqd,bhkd->bhqk", q, k) * (Dh ** -0.5)
        p = _softmax(scores, axis=-1)
        o = torch.einsum("bhqk,bhkd->bhqd", p, v)
        return (lambda x, *d: x.permute(*d))(o, 0, 2, 1, 3).reshape(B, Sq, Hq * Dh) @ wo

    a = _A_ref(A_x, A_k_cache, A_v_cache, A_wq, A_wo)
    b = _B_ref(B_x, B_k_cache, B_v_cache, B_wq, B_wo)
    return torch.concatenate([a, b], axis=-1)
```

```python
def V(b, n=1):
    return ('v', b, n)


def A(b, n=1):
    return ('a', b, n)


def S(b, n=1):
    return ('s', b, n)


def fmt(r):
    if isinstance(r, tuple):
        f, b, n = r
        return f'{f}{b}' if n == 1 else f'{f}[{b}:{b + n - 1}]'
    if isinstance(r, float):
        return repr(r)
    if isinstance(r, int):
        return str(r) if -16 <= r <= 64 else hex(r & 0xffffffff)
    return str(r)


def regs(r):
    if isinstance(r, tuple):
        f, b, n = r
        return [f'{f}{b + i}' for i in range(n)]
    if isinstance(r, str) and r in ('vcc', 'm0', 'exec', 'scc'):
        return [r]
    return []


TRANS = ('v_exp_f32', 'v_rcp_f32', 'v_log_f32', 'v_rsq_f32', 'v_sqrt_f32')


class Ins:
    __slots__ = ('text', 'kind', 'rd', 'wr', 'meta')

    def __init__(self, text, kind, rd=(), wr=(), meta=None):
        self.text, self.kind, self.rd, self.wr, self.meta = text, kind, list(rd), list(wr), meta or {}


class Asm:
    def __init__(self):
        self.ins = []

    def add(self, i):
        self.ins.append(i)
        return i

    def raw(self, text, kind='other', rd=(), wr=(), meta=None):
        return self.add(Ins(text, kind, rd, wr, meta))

    def comment(self, t):
        self.add(Ins('; ' + t, 'comment'))

    def label(self, name):
        self.add(Ins(name + ':', 'label'))


def mfma(D, Aop, Bop, C):
    rd = regs(Aop) + regs(Bop) + regs(C)
    return Ins(f'v_mfma_f32_16x16x32_bf16 {fmt(D)}, {fmt(Aop)}, {fmt(Bop)}, {fmt(C)}', 'mfma', rd, regs(D),
               {'A': regs(Aop), 'B': regs(Bop), 'C': C if isinstance(C, tuple) else None, 'D': D})


def valu(op, dst, *srcs, extra_rd=(), extra_wr=()):
    kind = 'trans' if op in TRANS else 'valu'
    rd = []
    for s in srcs:
        rd += regs(s)
    text = f'{op} {fmt(dst)}' + ''.join(', ' + fmt(s) for s in srcs)
    return Ins(text, kind, rd + list(extra_rd), regs(dst) + list(extra_wr), {'op': op})


def salu(op, dst, *srcs):
    rd = []
    for s in srcs:
        rd += regs(s)
    text = f'{op} {fmt(dst)}' + ''.join(', ' + fmt(s) for s in srcs)
    return Ins(text, 'salu', rd, regs(dst), {'op': op})


def buf_load(dst, voff, srd, soff, imm=0, flags='', tag=None):
    n = dst[2]
    op = {1: 'buffer_load_dword', 2: 'buffer_load_dwordx2', 4: 'buffer_load_dwordx4'}[n]
    t = f'{op} {fmt(dst)}, {fmt(voff)}, {fmt(srd)}, {fmt(soff)} offen'
    if imm:
        t += f' offset:{imm}'
    if flags:
        t += ' ' + flags
    return Ins(t, 'vload', regs(voff) + regs(srd) + regs(soff), regs(dst), {'tag': tag})


def dma(voff, srd, soff, imm=0, tag=None, flags=''):
    t = f'buffer_load_dwordx4 {fmt(voff)}, {fmt(srd)}, {fmt(soff)} offen'
    if imm:
        t += f' offset:{imm}'
    if flags:
        t += ' ' + flags
    t += ' lds'
    return Ins(t, 'dma', regs(voff) + regs(srd) + regs(soff) + ['m0'], [], {'tag': tag})


def buf_store(src, voff, srd, soff, imm=0, flags='', tag=None):
    n = src[2]
    op = {1: 'buffer_store_dword', 2: 'buffer_store_dwordx2', 4: 'buffer_store_dwordx4'}[n]
    t = f'{op} {fmt(src)}, {fmt(voff)}, {fmt(srd)}, {fmt(soff)} offen'
    if imm:
        t += f' offset:{imm}'
    if flags:
        t += ' ' + flags
    return Ins(t, 'vstore', regs(src) + regs(voff) + regs(srd) + regs(soff), [], {'tag': tag, 'data': regs(src)})


def ds_read(op, dst, addr, off=0):
    t = f'{op} {fmt(dst)}, {fmt(addr)}' + (f' offset:{off}' if off else '')
    return Ins(t, 'dsread', regs(addr), regs(dst))


def ds_write(op, addr, src, off=0):
    t = f'{op} {fmt(addr)}, {fmt(src)}' + (f' offset:{off}' if off else '')
    return Ins(t, 'dswrite', regs(addr) + regs(src), [])


def ds_bperm(dst, addr, src):
    return Ins(f'ds_bpermute_b32 {fmt(dst)}, {fmt(addr)}, {fmt(src)}', 'dsread', regs(addr) + regs(src), regs(dst))


def wait_vm_tag(tag):
    return Ins('', 'wait_tag', meta={'tag': tag})


def wait_all(vm=True, lgkm=True):
    return Ins('', 'wait_all', meta={'vm': vm, 'lgkm': lgkm})


def barrier():
    return Ins('s_barrier', 'barrier')


def nop(n):
    return Ins(f's_nop {n}', 'nop', meta={'n': n})


def interleave(main, fill, start=0, per=None):
    out = []
    nm = len(main) - start
    nf = len(fill)
    k = 0
    for i, m in enumerate(main):
        out.append(m)
        if i < start:
            continue
        j = i - start
        tgt = (nf * (j + 1) + nm - 1) // nm if per is None else min(nf, per * (j + 1))
        while k < tgt:
            out.append(fill[k])
            k += 1
    while k < nf:
        out.append(fill[k])
        k += 1
    return out


def finalize(ins_list, entry_pad=False):
    out = []
    pos = 0
    vq = []
    lq = []
    valu_w = {}
    trans_w = {}
    mfma_w = {}
    mfma_c = {}
    vsgpr_w = {}
    store_d = {}
    m0_w = -100
    stats = {'nops': 0, 'waits': 0}

    def emit(t, states=1):
        nonlocal pos
        out.append('    ' + t)
        pos += states

    def do_wait(nv, nl):
        nonlocal vq, lq
        parts = []
        if nv is not None:
            nv = min(nv, 63)
            parts.append(f'vmcnt({nv})')
            vq = vq[len(vq) - nv:] if nv > 0 else []
        if nl is not None:
            nl = min(nl, 15)
            parts.append(f'lgkmcnt({nl})')
            lq = lq[len(lq) - nl:] if nl > 0 else []
        if parts:
            emit('s_waitcnt ' + ' '.join(parts))
            stats['waits'] += 1

    if entry_pad:
        emit('s_nop 7', 8)
        emit('s_nop 7', 8)

    for I in ins_list:
        k = I.kind
        if k == 'comment':
            out.append('    ' + I.text)
            continue
        if k == 'label':
            out.append(I.text)
            continue
        if k == 'wait_tag':
            idx = None
            for n, (d, tag) in enumerate(vq):
                if tag == I.meta['tag']:
                    idx = n
            if idx is not None:
                do_wait(len(vq) - idx - 1, None)
            continue
        if k == 'wait_all':
            do_wait(0 if (I.meta['vm'] and vq) else None, 0 if (I.meta['lgkm']) else None)
            continue
        touched = set(I.rd) | set(I.wr)
        nv = nl = None
        for n, (d, tag) in enumerate(vq):
            if d & touched:
                x = len(vq) - n - 1
                nv = x if nv is None else min(nv, x)
        for n, (d, tag) in enumerate(lq):
            if d & touched:
                x = len(lq) - n - 1
                nl = x if nl is None else min(nl, x)
        do_wait(nv, nl)
        need = 0

        def req(prod_pos, states):
            nonlocal need
            if prod_pos is None:
                return
            gap = pos - prod_pos - 1
            if states - gap > need:
                need = states - gap

        if k == 'mfma':
            for r in I.rd:
                req(valu_w.get(r), 2)
            for r in I.meta['A'] + I.meta['B']:
                if r in mfma_w:
                    req(mfma_w[r][0], 8)
            C = I.meta['C']
            if C is not None:
                for r in regs(C):
                    if r in mfma_w:
                        req(mfma_w[r][0], 0 if mfma_w[r][1] == C else 6)
            for r in I.wr:
                if r in mfma_w and mfma_w[r][1] != I.meta['D']:
                    req(mfma_w[r][0], 6)
        elif k in ('valu', 'trans'):
            op = I.meta.get('op', '')
            for r in I.rd + I.wr:
                if r in mfma_w:
                    req(mfma_w[r][0], 8)
            for r in I.wr:
                req(mfma_c.get(r), 3)
                req(store_d.get(r), 2)
            for r in I.rd:
                req(trans_w.get(r), 1)
                req(vsgpr_w.get(r), 2)
                if op.startswith('v_readfirstlane') or op.startswith('v_readlane'):
                    req(valu_w.get(r), 1)
                if op.startswith('v_permlane') or 'dpp' in I.text:
                    req(valu_w.get(r), 2)
        elif k in ('vload', 'vstore', 'dma', 'dsread', 'dswrite'):
            for r in I.rd + I.wr:
                if r in mfma_w:
                    req(mfma_w[r][0], 8)
            for r in I.rd:
                req(vsgpr_w.get(r), 5)
            for r in I.wr:
                req(store_d.get(r), 1)
                req(mfma_c.get(r), 3)
            if k == 'dma':
                req(m0_w, 1)
        elif k in ('salu', 'branch'):
            for r in I.rd:
                req(vsgpr_w.get(r), 2)
        while need > 0:
            n = min(need, 16)
            emit(f's_nop {n - 1}', n)
            stats['nops'] += 1
            need -= n
        p = pos
        if k == 'nop':
            emit(I.text, I.meta['n'] + 1)
        else:
            emit(I.text)
        if k == 'mfma':
            for r in I.wr:
                mfma_w[r] = (p, I.meta['D'])
                valu_w.pop(r, None)
            if I.meta['C'] is not None:
                for r in regs(I.meta['C']):
                    mfma_c[r] = p
        elif k in ('valu', 'trans'):
            for r in I.wr:
                if r[0] in 'va' and r != 'vcc':
                    valu_w[r] = p
                    mfma_w.pop(r, None)
                    if k == 'trans':
                        trans_w[r] = p
                    else:
                        trans_w.pop(r, None)
                else:
                    vsgpr_w[r] = p
        elif k == 'salu':
            for r in I.wr:
                if r == 'm0':
                    m0_w = p
                vsgpr_w.pop(r, None)
        elif k == 'vload':
            vq.append((set(I.wr), I.meta.get('tag')))
            for r in I.wr:
                mfma_w.pop(r, None)
                valu_w.pop(r, None)
        elif k == 'dma':
            vq.append((set(), I.meta.get('tag')))
        elif k == 'vstore':
            vq.append((set(), I.meta.get('tag')))
            if len(I.meta['data']) >= 3:
                for r in I.meta['data']:
                    store_d[r] = p
        elif k == 'dsread':
            lq.append((set(I.wr), None))
            for r in I.wr:
                mfma_w.pop(r, None)
                valu_w.pop(r, None)
        elif k == 'dswrite':
            lq.append((set(), None))
    return out, stats
```

```python
import sys
import struct
from asmlib import *

NAME = 'concat_heads__gqa_block_cached__gqa_block_cached__near_ridge'
OUT = sys.argv[1] if len(sys.argv) > 1 else f'cdna_kernels/{NAME}.s'

HDR = open(f'cdna_kernels/{NAME}.s.ref').read().split('; Override launch')[0]


def f32bits(x):
    return struct.unpack('<I', struct.pack('<f', x))[0]


CSCALE = f32bits(1.4426950408889634 / (128.0 ** 0.5))
THRESH = f32bits(16.0)

sPTR = 16
SRD_X, SRD_K, SRD_V, SRD_WQ, SRD_WO, SRD_WS = S(44, 4), S(48, 4), S(52, 4), S(56, 4), S(60, 4), S(64, 4)
sH, sB, sBLK, sW = S(70), S(71), S(72), S(73)
sX = [S(74), S(75), S(76)]
sWOFF = S(77)
sKV = S(78)
sT0, sT1 = S(79), S(80)
sSELLO, sSELHI = S(82), S(83)
sLDSW = S(84)
sOUT = S(85)
sC = S(86)
sTH = S(87)

vJ, vG = V(1), V(2)
vOFFX = V(3)
vOFFWQ = [V(4 + e) for e in range(8)]
vOFFK = [V(12 + i) for i in range(4)]
vOFFV = [V(16 + i) for i in range(2)]
vKB = [V(18 + s) for s in range(4)]
vVB = [V(22 + d) for d in range(8)]
vOFFWO = [V(30), V(31)]
TR = 32
ACC = 64
RAW = 160
NEGM = 32
ONES = V(44, 4)
vKA = [V(48 + s) for s in range(4)]
vVA = [V(52 + d) for d in range(8)]
vTMP = [V(60 + i) for i in range(4)]
SB = [64, 112]
QF = 160
PF = 224
vT = [V(248 + i) for i in range(8)]
XF = 0
OACC = 0
LACC = 96
KF = 128
VF = 192


def acc(t, mt):
    return V(ACC + (t * 3 + mt) * 4, 4)


def tr(t):
    return V(TR + t * 4, 4)


def raw(buf, e):
    return V(RAW + buf * 32 + e * 4, 4)


def xf(ks, mt):
    return A(XF + (ks * 3 + mt) * 4, 4)


def sreg(par, kt, qt):
    return V(SB[par] + (kt * 3 + qt) * 4, 4)


def qf(qt, s):
    return V(QF + (qt * 4 + s) * 4, 4)


def pf(ks, qt):
    return V(PF + (ks * 3 + qt) * 4, 4)


def negm(qt):
    return V(NEGM + qt * 4, 4)


def oacc(dt, qt):
    return A(OACC + (dt * 3 + qt) * 4, 4)


def lacc(qt):
    return A(LACC + qt * 4, 4)


def kf(kt, s):
    return A(KF + (kt * 4 + s) * 4, 4)


def vf(dt, ks):
    return A(VF + (dt * 2 + ks) * 4, 4)


def perms(buf, t):
    o = []
    for p in range(4):
        lo = V(RAW + buf * 32 + (2 * p) * 4 + t // 2)
        hi = V(RAW + buf * 32 + (2 * p + 1) * 4 + t // 2)
        o.append(valu('v_perm_b32', V(TR + t * 4 + p), hi, lo, sSELHI if t & 1 else sSELLO))
    return o


def dma_group(kind, c):
    slot = (c % 5) * 32768 + (16384 if kind == 'V' else 0)
    o = [salu('s_add_u32', 'm0', sLDSW, slot),
         salu('s_add_u32', sT0, sKV, c * 16384)]
    for i in range(4):
        voff = vOFFK[i] if kind == 'K' else vOFFV[i & 1]
        o.append(dma(voff, SRD_K if kind == 'K' else SRD_V, sT0, i * 1024, tag=f'{kind}{c}'))
    return o


def gemm_phase(L, is_q, bfrag, extra=None):
    NB = 3

    def wloads(ks):
        o = []
        buf = ks % NB
        if is_q:
            for e in range(8):
                o.append(buf_load(raw(buf, e), vOFFWQ[e], SRD_WQ, sWOFF))
            o.append(salu('s_add_u32', sWOFF, sWOFF, 262144))
        else:
            for e in range(8):
                o.append(buf_load(raw(buf, e), vOFFWO[e >> 2], SRD_WO, sWOFF, (e & 3) * 1024))
            o.append(salu('s_add_u32', sWOFF, sWOFF, 32768))
        return o

    def xloads(ks):
        if not is_q:
            return []
        return [buf_load(xf(ks, mt), vOFFX, SRD_X, sX[mt], ks * 64) for mt in range(3)]

    return wloads, xloads


def build_main():
    L = []
    e = L.append
    ex = L.extend
    slow_paths = []

    e(Ins('s_cmp_ge_u32 s2, 256', 'salu', ['s2'], ['scc']))
    e(Ins('s_cbranch_scc1 L_exit', 'branch', ['scc']))
    e(Ins('s_load_dwordx16 s[16:31], s[0:1], 0', 'smem', [], regs(S(16, 16))))
    e(Ins('s_load_dwordx8 s[32:39], s[0:1], 64', 'smem', [], regs(S(32, 8))))
    e(Ins('s_load_dwordx2 s[40:41], s[0:1], 96', 'smem', [], regs(S(40, 2))))
    e(salu('s_and_b32', sH, S(2), 7))
    e(salu('s_lshr_b32', sT0, S(2), 3))
    e(salu('s_and_b32', sB, sT0, 15))
    e(salu('s_lshr_b32', sBLK, sT0, 4))
    e(valu('v_lshrrev_b32', vT[0], 6, V(0)))
    e(valu('v_readfirstlane_b32', sW, vT[0]))
    e(valu('v_and_b32', vJ, 15, V(0)))
    e(valu('v_bfe_u32', vG, V(0), 4, 2))
    e(salu('s_mov_b32', sSELLO, 0x05040100))
    e(salu('s_mov_b32', sSELHI, 0x07060302))
    e(salu('s_mov_b32', sC, CSCALE))
    e(salu('s_mov_b32', sTH, THRESH))
    e(valu('v_lshlrev_b32', vT[0], 4, vG))
    e(valu('v_lshl_add_u32', vOFFX, vJ, 10, vT[0]))
    e(valu('v_lshlrev_b32', vT[0], 4, vJ))
    e(valu('v_lshl_add_u32', vOFFWQ[0], vG, 16, vT[0]))
    for ee in range(1, 8):
        e(valu('v_add_u32', vOFFWQ[ee], 8192 * ee, vOFFWQ[0]))
    e(valu('v_lshl_add_u32', vOFFWO[0], vG, 13, vT[0]))
    e(valu('v_add_u32', vOFFWO[1], 4096, vOFFWO[0]))
    for i in range(4):
        e(valu('v_add_u32', vT[1], 4 * i + 4, vG))
        e(valu('v_and_b32', vT[1], 15, vT[1]))
        e(valu('v_xor_b32', vT[1], vT[1], vJ))
        e(valu('v_lshlrev_b32', vT[1], 4, vT[1]))
        e(valu('v_lshl_add_u32', vOFFK[i], vG, 8, vT[1]))
    for i in range(2):
        e(valu('v_add_u32', vT[1], 4 * i, vG))
        e(valu('v_lshlrev_b32', vT[1], 1, vT[1]))
        e(valu('v_xor_b32', vT[1], vT[1], vJ))
        e(valu('v_lshlrev_b32', vT[1], 4, vT[1]))
        e(valu('v_lshl_add_u32', vOFFV[i], vG, 8, vT[1]))
    e(valu('v_add_u32', vT[2], 4, vJ))
    e(valu('v_and_b32', vT[2], 15, vT[2]))
    for s in range(4):
        e(valu('v_lshl_add_u32', vT[1], vG, 2, s))
        e(valu('v_xor_b32', vT[1], vT[1], vT[2]))
        e(valu('v_lshlrev_b32', vT[1], 4, vT[1]))
        e(valu('v_lshl_add_u32', vKB[s], vJ, 8, vT[1]))
    e(valu('v_lshrrev_b32', vT[3], 2, vJ))
    e(valu('v_lshl_add_u32', vT[4], vG, 2, vT[3]))
    e(valu('v_and_b32', vT[5], 7, vT[4]))
    e(valu('v_and_b32', vT[6], 3, vJ))
    e(valu('v_lshlrev_b32', vT[6], 3, vT[6]))
    e(valu('v_lshl_add_u32', vT[6], vT[4], 8, vT[6]))
    for dt in range(8):
        e(valu('v_xor_b32', vT[1], dt, vT[5]))
        e(valu('v_lshl_add_u32', vVB[dt], vT[1], 5, vT[6]))
    e(Ins('s_waitcnt lgkmcnt(0)', 'other'))
    e(Ins(f's_cmp_eq_u32 {fmt(sBLK)}, 0', 'salu', regs(sBLK), ['scc']))
    for srd, pa, size in ((SRD_X, 16, 786432), (SRD_K, 18, 16777216), (SRD_V, 20, 16777216),
                          (SRD_WQ, 22, 4194304), (SRD_WO, 24, 4194304)):
        e(Ins(f's_cselect_b64 s[{srd[1]}:{srd[1] + 1}], s[{pa}:{pa + 1}], s[{pa + 10}:{pa + 11}]', 'salu',
              ['scc'] + regs(S(pa, 2)) + regs(S(pa + 10, 2)), regs(S(srd[1], 2))))
        e(salu('s_mov_b32', S(srd[1] + 2), size))
        e(salu('s_mov_b32', S(srd[1] + 3), 0x20000))
    e(salu('s_mov_b64', S(SRD_WS[1], 2), S(40, 2)))
    e(salu('s_mov_b32', S(SRD_WS[1] + 2), 32 * 8 * 48 * 2048))
    e(salu('s_mov_b32', S(SRD_WS[1] + 3), 0x20000))
    e(salu('s_mul_i32', sX[0], sB, 49152))
    e(salu('s_add_u32', sX[1], sX[0], 16384))
    e(salu('s_add_u32', sX[2], sX[0], 32768))
    e(salu('s_lshl_b32', sT0, sH, 2))
    e(salu('s_add_u32', sT0, sT0, sW))
    e(salu('s_lshl_b32', sWOFF, sT0, 8))
    e(salu('s_lshl_b32', sLDSW, sW, 12))
    e(salu('s_lshl_b32', sT0, sB, 3))
    e(salu('s_add_u32', sT0, sT0, sH))
    e(salu('s_lshl_b32', sKV, sT0, 17))
    e(salu('s_add_u32', sKV, sKV, sLDSW))
    e(salu('s_lshl_b32', sT1, sBLK, 7))
    e(salu('s_add_u32', sT0, sT0, sT1))
    e(salu('s_mul_i32', sOUT, sT0, 48 * 2048))
    e(salu('s_lshl_b32', sT1, sW, 9))
    e(salu('s_add_u32', sOUT, sOUT, sT1))

    def gemm(is_q, bfrag, extra, pre_issued=0):
        wloads, xloads = gemm_phase(L, is_q, bfrag)
        for ks in range(pre_issued, 3):
            ex(xloads(ks))
            ex(wloads(ks))
        for t in range(8):
            ex(perms(0, t))
        ex(xloads(3))
        ex(wloads(3))
        for ks in range(16):
            for t in range(8):
                for mt in range(3):
                    e(mfma(acc(t, mt), tr(t), bfrag(ks, mt), acc(t, mt) if ks else 0))
                if ks + 1 < 16:
                    ex(perms((ks + 1) % 3, t))
            if ks + 4 < 16:
                ex(xloads(ks + 4))
                ex(wloads(ks + 4))
            if extra and ks in extra:
                ex(extra[ks])
        return wloads

    L.append(Ins('; ======== phase 1: Q projection', 'comment'))
    extra = {}
    g = 0
    for c in range(5):
        for kind in 'KV':
            extra[g] = dma_group(kind, c)
            g += 1
    gemm(True, xf, extra)

    L.append(Ins('; ======== Q fragments', 'comment'))
    for qt in range(3):
        for s in range(4):
            for p in range(4):
                a0 = V(acc(2 * p, qt)[1] + s)
                a1 = V(acc(2 * p + 1, qt)[1] + s)
                e(valu('v_mul_f32', a0, sC, a0))
                e(valu('v_mul_f32', a1, sC, a1))
                e(valu('v_cvt_pk_bf16_f32', V(qf(qt, s)[1] + p), a0, a1))
    for r in range(4):
        e(valu('v_mov_b32', V(ONES[1] + r), 0x3f803f80))
    for i in range(108):
        e(valu('v_accvgpr_write_b32', A(OACC + i), 0))

    def kaddr(c):
        return [valu('v_add_u32', vKA[s], (c % 5) * 32768, vKB[s]) for s in range(4)]

    def vaddr(c):
        return [valu('v_add_u32', vVA[d], (c % 5) * 32768 + 16384, vVB[d]) for d in range(8)]

    def kreads():
        return [ds_read('ds_read_b128', kf(kt, s), vKA[s], kt * 4096) for kt in range(4) for s in range(4)]

    def vreads():
        o = []
        for ks in range(2):
            for dt in range(8):
                for hf in range(2):
                    o.append(ds_read('ds_read_b64_tr_b16', A(vf(dt, ks)[1] + 2 * hf, 2), vVA[dt], ks * 8192 + hf * 4096))
        return o

    def qk_mfmas(par, first):
        o = []
        for kt in range(4):
            for s in range(4):
                for qt in range(3):
                    C = sreg(par, kt, qt) if s else (0 if first else negm(qt))
                    o.append(mfma(sreg(par, kt, qt), kf(kt, s), qf(qt, s), C))
        return o

    def exp_ops(par):
        o = []
        for kt in range(4):
            for qt in range(3):
                b = sreg(par, kt, qt)[1]
                for r in range(4):
                    o.append(valu('v_exp_f32', V(b + r), V(b + r)))
                pb = pf(kt // 2, qt)[1] + (kt & 1) * 2
                o.append(valu('v_cvt_pk_bf16_f32', V(pb), V(b), V(b + 1)))
                o.append(valu('v_cvt_pk_bf16_f32', V(pb + 1), V(b + 2), V(b + 3)))
        return o

    def pv_mfmas():
        o = []
        for ks in range(2):
            for dt in range(8):
                for qt in range(3):
                    o.append(mfma(oacc(dt, qt), vf(dt, ks), pf(ks, qt), oacc(dt, qt)))
            for qt in range(3):
                o.append(mfma(lacc(qt), ONES, pf(ks, qt), lacc(qt)))
        return o

    def max_all(par):
        o = []
        b = SB[par]
        o.append(valu('v_max3_f32', vTMP[0], V(b), V(b + 1), V(b + 2)))
        for i in range(3, 47, 2):
            o.append(valu('v_max3_f32', vTMP[0], vTMP[0], V(b + i), V(b + i + 1)))
        o.append(valu('v_max_f32', vTMP[0], vTMP[0], V(b + 47)))
        return o

    def rebase(par, first):
        o = []
        o.append(valu('v_and_b32', vT[6], 63, V(0)))
        o.append(valu('v_xor_b32', vT[4], 16, vT[6]))
        o.append(valu('v_lshlrev_b32', vT[4], 2, vT[4]))
        o.append(valu('v_xor_b32', vT[5], 32, vT[6]))
        o.append(valu('v_lshlrev_b32', vT[5], 2, vT[5]))
        for qt in range(3):
            m = vT[qt]
            vals = [V(sreg(par, kt, qt)[1] + r) for kt in range(4) for r in range(4)]
            o.append(valu('v_max3_f32', m, vals[0], vals[1], vals[2]))
            for i in range(3, 15, 2):
                o.append(valu('v_max3_f32', m, m, vals[i], vals[i + 1]))
            o.append(valu('v_max_f32', m, m, vals[15]))
            o.append(ds_bperm(vT[7], vT[4], m))
            o.append(valu('v_max_f32', m, m, vT[7]))
            o.append(ds_bperm(vT[7], vT[5], m))
            o.append(valu('v_max_f32', m, m, vT[7]))
            if not first:
                o.append(valu('v_max_f32', m, 0, m))
            for v in vals:
                o.append(valu('v_sub_f32', v, v, m))
            if first:
                for r in range(4):
                    o.append(valu('v_sub_f32', V(negm(qt)[1] + r), 0, m))
            else:
                for r in range(4):
                    o.append(valu('v_sub_f32', V(negm(qt)[1] + r), V(negm(qt)[1] + r), m))
                o.append(valu('v_sub_f32', vT[7], 0, m))
                o.append(valu('v_exp_f32', vT[7], vT[7]))
                accs = [A(oacc(dt, qt)[1] + r) for dt in range(8) for r in range(4)] + [A(lacc(qt)[1] + r) for r in range(4)]
                for a_ in accs:
                    o.append(valu('v_accvgpr_read_b32', vT[6], a_))
                    o.append(valu('v_mul_f32', vT[6], vT[6], vT[7]))
                    o.append(valu('v_accvgpr_write_b32', a_, vT[6]))
        return o

    L.append(Ins('; ======== attention prologue', 'comment'))
    ex(kaddr(0))
    e(wait_vm_tag('K0'))
    e(barrier())
    ex(interleave(kreads(), []))
    ex(qk_mfmas(0, True))
    ex(rebase(0, True))

    wl4 = None
    for c in range(8):
        par = c & 1
        L.append(Ins(f'; ======== attention chunk {c}', 'comment'))
        if c < 7:
            ex(kaddr(c + 1))
            e(wait_vm_tag(f'K{c + 1}'))
        ex(vaddr(c))
        e(wait_vm_tag(f'V{c}'))
        e(wait_all(vm=False, lgkm=True))
        e(barrier())
        if 1 <= c <= 3:
            ex(dma_group('K', c + 4))
            ex(dma_group('V', c + 4))
        if c < 7:
            kr = kreads()
            ex(kr[:8])
            fill = kr[8:] + interleave(exp_ops(par), vreads())
            ex(interleave(qk_mfmas(par ^ 1, False), fill))
        else:
            ex(interleave(exp_ops(par), vreads()))
        if c == 6:
            e(salu('s_lshl_b32', sT0, sH, 19))
            e(salu('s_lshl_b32', sT1, sW, 8))
            e(salu('s_add_u32', sWOFF, sT0, sT1))
            wl4, _ = gemm_phase(L, False, None)
            ex(wl4(0))
        if c < 7:
            ex(interleave(pv_mfmas(), max_all(par ^ 1), start=12))
            e(Ins(f"v_cmp_lt_f32 vcc, {fmt(sTH)}, {fmt(vTMP[0])}", 'valu', regs(vTMP[0]) + regs(sTH), ['vcc'], {'op': 'v_cmp'}))
            e(nop(3))
            e(Ins(f's_cbranch_vccnz L_slow{c}', 'branch', ['vcc']))
            e(Ins(f'L_back{c}:', 'label'))
            sp = rebase(par ^ 1, False)
            sp.append(nop(7))
            sp.append(nop(7))
            sp.append(Ins(f's_branch L_back{c}', 'branch'))
            slow_paths.append((f'L_slow{c}', sp))
        else:
            ex(pv_mfmas())

    L.append(Ins('; ======== O normalise -> LDS', 'comment'))
    e(valu('v_add_u32', vT[2], 4, vJ))
    e(valu('v_and_b32', vT[2], 15, vT[2]))
    e(valu('v_lshrrev_b32', vT[3], 1, vG))
    e(valu('v_and_b32', vT[4], 1, vG))
    e(valu('v_lshlrev_b32', vT[4], 3, vT[4]))
    e(valu('v_lshl_add_u32', vT[4], vJ, 10, vT[4]))
    e(salu('s_lshl_b32', sT0, sW, 8))
    e(valu('v_add_u32', vT[4], sT0, vT[4]))
    OW = [V(4 + d) for d in range(8)]
    for dt in range(8):
        e(valu('v_add_u32', vT[5], 2 * dt, vT[3]))
        e(valu('v_xor_b32', vT[5], vT[5], vT[2]))
        e(valu('v_lshl_add_u32', OW[dt], vT[5], 4, vT[4]))
    OR = [V(12 + i) for i in range(4)]
    for i in range(4):
        e(valu('v_add_u32', vT[5], 4 * i, vG))
        e(valu('v_xor_b32', vT[5], vT[5], vT[2]))
        e(valu('v_lshlrev_b32', vT[5], 4, vT[5]))
        e(valu('v_lshl_add_u32', OR[i], vJ, 10, vT[5]))
    tmp = SB[0]
    for qt in range(3):
        e(valu('v_accvgpr_read_b32', vT[6], A(lacc(qt)[1])))
        e(valu('v_rcp_f32', vT[6], vT[6]))
        for dt in range(8):
            b = tmp + ((qt * 8 + dt) % 8) * 6
            for r in range(4):
                e(valu('v_accvgpr_read_b32', V(b + r), A(oacc(dt, qt)[1] + r)))
                e(valu('v_mul_f32', V(b + r), V(b + r), vT[6]))
            e(valu('v_cvt_pk_bf16_f32', V(b + 4), V(b), V(b + 1)))
            e(valu('v_cvt_pk_bf16_f32', V(b + 5), V(b + 2), V(b + 3)))
            e(ds_write('ds_write_b64', OW[dt], V(b + 4, 2), qt * 16384))
    ex(wl4(1))
    e(wait_all(vm=False, lgkm=True))
    e(barrier())
    L.append(Ins('; ======== phase 4: output projection', 'comment'))
    for ks in range(16):
        for mt in range(3):
            e(ds_read('ds_read_b128', xf(ks, mt), OR[ks & 3], (ks >> 2) * 256 + mt * 16384))
    gemm(False, xf, None, pre_issued=2)

    L.append(Ins('; ======== store partials', 'comment'))
    e(valu('v_lshlrev_b32', vT[0], 7, vG))
    e(valu('v_lshl_add_u32', vT[0], vJ, 11, vT[0]))
    for mt in range(3):
        if mt:
            e(salu('s_add_u32', sOUT, sOUT, 32768))
        for r in range(4):
            b = RAW + ((mt * 4 + r) % 8) * 8
            for t in range(8):
                e(valu('v_mov_b32', V(b + t), V(acc(t, mt)[1] + r)))
            e(buf_store(V(b, 4), vT[0], SRD_WS, sOUT, r * 32))
            e(buf_store(V(b + 4, 4), vT[0], SRD_WS, sOUT, r * 32 + 16))
    e(Ins('L_exit:', 'label'))
    e(Ins('s_endpgm', 'other'))
    lines, stats = finalize(L)
    print('main', stats, len(lines), file=sys.stderr)
    for name, sp in slow_paths:
        lines.append(name + ':')
        l2, _ = finalize(sp, entry_pad=True)
        lines += l2
    return lines


def build_reduce():
    L = []
    e = L.append
    e(Ins('s_cmp_ge_u32 s2, 384', 'salu', ['s2'], ['scc']))
    e(Ins('s_cbranch_scc1 R_exit', 'branch', ['scc']))
    e(Ins('s_load_dwordx2 s[4:5], s[0:1], 80', 'smem', [], regs(S(4, 2))))
    e(Ins('s_load_dwordx2 s[6:7], s[0:1], 96', 'smem', [], regs(S(6, 2))))
    e(salu('s_mul_i32', S(20), S(2), 5462))
    e(salu('s_lshr_b32', S(20), S(20), 16))
    e(salu('s_mul_i32', S(21), S(20), 12))
    e(salu('s_sub_u32', S(21), S(2), S(21)))
    e(valu('v_lshrrev_b32', V(1), 6, V(0)))
    e(salu('s_lshl_b32', S(22), S(21), 2))
    e(valu('v_add_u32', V(1), S(22), V(1)))
    e(valu('v_and_b32', V(2), 63, V(0)))
    e(valu('v_lshlrev_b32', V(3), 5, V(2)))
    e(valu('v_lshl_add_u32', V(3), V(1), 11, V(3)))
    e(salu('s_mul_i32', S(23), S(20), 8 * 48 * 2048))
    e(valu('v_lshlrev_b32', V(4), 4, V(2)))
    e(valu('v_lshl_add_u32', V(4), V(1), 11, V(4)))
    e(salu('s_and_b32', S(24), S(20), 15))
    e(salu('s_mul_i32', S(24), S(24), 48 * 2048))
    e(salu('s_lshr_b32', S(25), S(20), 4))
    e(salu('s_lshl_b32', S(25), S(25), 10))
    e(salu('s_add_u32', S(24), S(24), S(25)))
    e(Ins('s_waitcnt lgkmcnt(0)', 'other'))
    e(salu('s_mov_b64', S(8, 2), S(4, 2)))
    e(salu('s_mov_b32', S(10), 16 * 48 * 1024 * 2))
    e(salu('s_mov_b32', S(11), 0x20000))
    e(salu('s_mov_b64', S(12, 2), S(6, 2)))
    e(salu('s_mov_b32', S(14), 32 * 8 * 48 * 2048))
    e(salu('s_mov_b32', S(15), 0x20000))
    for hh in range(8):
        e(buf_load(V(8 + hh * 8, 4), V(3), S(12, 4), S(23)))
        e(buf_load(V(12 + hh * 8, 4), V(3), S(12, 4), S(23), 16))
        if hh < 7:
            e(salu('s_add_u32', S(23), S(23), 48 * 2048))
    for hh in range(1, 8):
        for i in range(8):
            e(valu('v_add_f32', V(8 + i), V(8 + i), V(8 + hh * 8 + i)))
    for i in range(4):
        e(valu('v_cvt_pk_bf16_f32', V(72 + i), V(8 + 2 * i), V(9 + 2 * i)))
    e(buf_store(V(72, 4), V(4), S(8, 4), S(24)))
    e(Ins('R_exit:', 'label'))
    e(Ins('s_endpgm', 'other'))
    lines, stats = finalize(L)
    return lines


def kd(name, vgpr, accum, sgpr):
    return f""".amdhsa_kernel {name}
  .amdhsa_next_free_vgpr {vgpr}
  .amdhsa_next_free_sgpr {sgpr}
  .amdhsa_accum_offset {accum}
  .amdhsa_group_segment_fixed_size 0
  .amdhsa_kernarg_size 104
  .amdhsa_user_sgpr_count 2
  .amdhsa_user_sgpr_kernarg_segment_ptr 1
  .amdhsa_system_sgpr_workgroup_id_x 1
.end_amdhsa_kernel
"""


for wg in range(384 + 16):
    assert (wg * 5462) >> 16 == wg // 12

main = build_main()
red = build_reduce()
txt = HDR
txt += f'; @launch kernel={NAME}_kernel grid=(256,1,1) block=(256,1,1) lds=163840\n'
txt += '; @launch kernel=reduce_kernel grid=(384,1,1) block=(256,1,1) lds=0\n'
txt += '.amdgcn_target "amdgcn-amd-amdhsa--gfx950"\n.text\n'
txt += f'.globl {NAME}_kernel\n.p2align 8\n.type {NAME}_kernel,@function\n{NAME}_kernel:\n'
txt += '\n'.join(main) + '\n'
txt += '.globl reduce_kernel\n.p2align 8\n.type reduce_kernel,@function\nreduce_kernel:\n'
txt += '\n'.join(red) + '\n'
txt += '.section .rodata,"a"\n.p2align 6\n'
txt += kd(f'{NAME}_kernel', 512, 256, 96)
txt += '.p2align 6\n'
txt += kd('reduce_kernel', 80, 80, 32)
open(OUT, 'w').write(txt)
print('wrote', OUT, len(txt), file=sys.stderr)
```

```python
import sys
import struct
from asmlib import *

NAME = 'concat_heads__gqa_block_cached__gqa_block_cached__near_ridge'
OUT = sys.argv[1] if len(sys.argv) > 1 else f'cdna_kernels/{NAME}.s'

HDR = open(f'cdna_kernels/{NAME}.s.ref').read().split('; Override launch')[0]


def f32bits(x):
    return struct.unpack('<I', struct.pack('<f', x))[0]


CSCALE = f32bits(1.4426950408889634 / (128.0 ** 0.5))
THRESH = f32bits(16.0)

sPTR = 16
SRD_X, SRD_K, SRD_V, SRD_WQ, SRD_WO, SRD_WS = S(44, 4), S(48, 4), S(52, 4), S(56, 4), S(60, 4), S(64, 4)
sH, sB, sBLK, sW = S(70), S(71), S(72), S(73)
sX = [S(74), S(75), S(76)]
sWOFF = S(77)
sKV = S(78)
sT0, sT1 = S(79), S(80)
sSELLO, sSELHI = S(82), S(83)
sLDSW = S(84)
sOUT = S(85)
sC = S(86)
sTH = S(87)
sWBASE = S(88)
sKK = S(89)
sT2 = S(92)

vJ, vG = V(1), V(2)
vOFFX = V(3)
vOFFWQ = [V(4 + e) for e in range(8)]
vOFFK = [V(12 + i) for i in range(4)]
vOFFV = [V(16 + i) for i in range(2)]
vKB = [V(18 + s) for s in range(4)]
vVB = [V(22 + d) for d in range(8)]
vOFFWO = [V(30), V(31)]
TR = 32
ACC = 64
RAW = 160
NEGM = 32
ONES = V(44, 4)
vKA = [V(48 + s) for s in range(4)]
vVA = [V(52 + d) for d in range(8)]
vTMP = [V(60 + i) for i in range(4)]
SB = [64, 112]
QF = 160
PF = 224
vT = [V(248 + i) for i in range(8)]
XF = 0
OACC = 0
LACC = 96
KF = 128
VF = 192


def acc(t, mt):
    return V(ACC + (t * 3 + mt) * 4, 4)


def tr(t):
    return V(TR + t * 4, 4)


def raw(buf, e):
    return V(RAW + buf * 32 + e * 4, 4)


def xf(ks, mt):
    return A(XF + (ks * 3 + mt) * 4, 4)


def sreg(par, kt, qt):
    return V(SB[par] + (kt * 3 + qt) * 4, 4)


def qf(qt, s):
    return V(QF + (qt * 4 + s) * 4, 4)


def pf(ks, qt):
    return V(PF + (ks * 3 + qt) * 4, 4)


def negm(qt):
    return V(NEGM + qt * 4, 4)


def oacc(dt, qt):
    return A(OACC + (dt * 3 + qt) * 4, 4)


def lacc(qt):
    return A(LACC + qt * 4, 4)


def kf(kt, s):
    return A(KF + (kt * 4 + s) * 4, 4)


def vf(dt, ks):
    return A(VF + (dt * 2 + ks) * 4, 4)


def perms(buf, t):
    o = []
    for p in range(4):
        lo = V(RAW + buf * 32 + (2 * p) * 4 + t // 2)
        hi = V(RAW + buf * 32 + (2 * p + 1) * 4 + t // 2)
        o.append(valu('v_perm_b32', V(TR + t * 4 + p), hi, lo, sSELHI if t & 1 else sSELLO))
    return o


def dma_group(kind, c):
    slot = (c % 5) * 32768 + (16384 if kind == 'V' else 0)
    o = [salu('s_add_u32', 'm0', sLDSW, slot),
         salu('s_add_u32', sT0, sKV, c * 16384)]
    for i in range(4):
        voff = vOFFK[i] if kind == 'K' else vOFFV[i & 1]
        o.append(dma(voff, SRD_K if kind == 'K' else SRD_V, sT0, i * 1024, tag=f'{kind}{c}'))
    return o


def gemm_phase(L, is_q, bfrag, extra=None):
    NB = 3

    def wloads(ks):
        o = []
        buf = ks % NB
        o.append(salu('s_add_u32', sKK, sB, ks))
        o.append(salu('s_and_b32', sKK, sKK, 15))
        o.append(salu('s_lshl_b32', sKK, sKK, 18 if is_q else 15))
        o.append(salu('s_add_u32', sWOFF, sWBASE, sKK))
        if is_q:
            for e in range(8):
                o.append(buf_load(raw(buf, e), vOFFWQ[e], SRD_WQ, sWOFF))
        else:
            for e in range(8):
                o.append(buf_load(raw(buf, e), vOFFWO[e >> 2], SRD_WO, sWOFF, (e & 3) * 1024))
        return o

    def xloads(ks):
        return []

    return wloads, xloads


import os
STAMP = int(os.environ.get('STAMP', '0'))
STREGS = [3, 4, 5, 6, 7, 8, 9, 10, 11, 12, 13, 14, 15, 42, 43, 68]


def build_main():
    L = []
    e = L.append
    ex = L.extend
    slow_paths = []
    nst = [0]

    def stamp():
        if not STAMP:
            return
        e(wait_all(vm=False, lgkm=True))
        e(Ins('s_memtime s[90:91]', 'smem', [], ['s90', 's91']))
        e(Ins('s_waitcnt lgkmcnt(0)', 'other'))
        e(salu('s_mov_b32', S(STREGS[nst[0]]), S(90)))
        nst[0] += 1

    e(Ins('s_cmp_ge_u32 s2, 256', 'salu', ['s2'], ['scc']))
    e(Ins('s_cbranch_scc1 L_exit', 'branch', ['scc']))
    e(Ins('s_load_dwordx16 s[16:31], s[0:1], 0', 'smem', [], regs(S(16, 16))))
    e(Ins('s_load_dwordx8 s[32:39], s[0:1], 64', 'smem', [], regs(S(32, 8))))
    e(Ins('s_load_dwordx2 s[40:41], s[0:1], 96', 'smem', [], regs(S(40, 2))))
    e(salu('s_and_b32', sH, S(2), 7))
    e(salu('s_lshr_b32', sT0, S(2), 3))
    e(salu('s_and_b32', sB, sT0, 15))
    e(salu('s_lshr_b32', sBLK, sT0, 4))
    e(valu('v_lshrrev_b32', vT[0], 6, V(0)))
    e(valu('v_readfirstlane_b32', sW, vT[0]))
    e(valu('v_and_b32', vJ, 15, V(0)))
    e(valu('v_bfe_u32', vG, V(0), 4, 2))
    e(salu('s_mov_b32', sSELLO, 0x05040100))
    e(salu('s_mov_b32', sSELHI, 0x07060302))
    e(salu('s_mov_b32', sC, CSCALE))
    e(salu('s_mov_b32', sTH, THRESH))
    e(valu('v_lshlrev_b32', vT[0], 4, vG))
    e(valu('v_lshl_add_u32', vOFFX, vJ, 10, vT[0]))
    e(valu('v_lshlrev_b32', vT[0], 4, vJ))
    e(valu('v_lshl_add_u32', vOFFWQ[0], vG, 16, vT[0]))
    for ee in range(1, 8):
        e(valu('v_add_u32', vOFFWQ[ee], 8192 * ee, vOFFWQ[0]))
    e(valu('v_lshl_add_u32', vOFFWO[0], vG, 13, vT[0]))
    e(valu('v_add_u32', vOFFWO[1], 4096, vOFFWO[0]))
    for i in range(4):
        e(valu('v_add_u32', vT[1], 4 * i + 4, vG))
        e(valu('v_and_b32', vT[1], 15, vT[1]))
        e(valu('v_xor_b32', vT[1], vT[1], vJ))
        e(valu('v_lshlrev_b32', vT[1], 4, vT[1]))
        e(valu('v_lshl_add_u32', vOFFK[i], vG, 8, vT[1]))
    for i in range(2):
        e(valu('v_add_u32', vT[1], 4 * i, vG))
        e(valu('v_lshlrev_b32', vT[1], 1, vT[1]))
        e(valu('v_xor_b32', vT[1], vT[1], vJ))
        e(valu('v_lshlrev_b32', vT[1], 4, vT[1]))
        e(valu('v_lshl_add_u32', vOFFV[i], vG, 8, vT[1]))
    e(valu('v_add_u32', vT[2], 4, vJ))
    e(valu('v_and_b32', vT[2], 15, vT[2]))
    for s in range(4):
        e(valu('v_lshl_add_u32', vT[1], vG, 2, s))
        e(valu('v_xor_b32', vT[1], vT[1], vT[2]))
        e(valu('v_lshlrev_b32', vT[1], 4, vT[1]))
        e(valu('v_lshl_add_u32', vKB[s], vJ, 8, vT[1]))
    e(valu('v_lshrrev_b32', vT[3], 2, vJ))
    e(valu('v_lshl_add_u32', vT[4], vG, 2, vT[3]))
    e(valu('v_and_b32', vT[5], 7, vT[4]))
    e(valu('v_and_b32', vT[6], 3, vJ))
    e(valu('v_lshlrev_b32', vT[6], 3, vT[6]))
    e(valu('v_lshl_add_u32', vT[6], vT[4], 8, vT[6]))
    for dt in range(8):
        e(valu('v_xor_b32', vT[1], dt, vT[5]))
        e(valu('v_lshl_add_u32', vVB[dt], vT[1], 5, vT[6]))
    e(Ins('s_waitcnt lgkmcnt(0)', 'other'))
    e(Ins(f's_cmp_eq_u32 {fmt(sBLK)}, 0', 'salu', regs(sBLK), ['scc']))
    for srd, pa, size in ((SRD_X, 16, 786432), (SRD_K, 18, 16777216), (SRD_V, 20, 16777216),
                          (SRD_WQ, 22, 4194304), (SRD_WO, 24, 4194304)):
        e(Ins(f's_cselect_b64 s[{srd[1]}:{srd[1] + 1}], s[{pa}:{pa + 1}], s[{pa + 10}:{pa + 11}]', 'salu',
              ['scc'] + regs(S(pa, 2)) + regs(S(pa + 10, 2)), regs(S(srd[1], 2))))
        e(salu('s_mov_b32', S(srd[1] + 2), size))
        e(salu('s_mov_b32', S(srd[1] + 3), 0x20000))
    e(salu('s_mov_b64', S(SRD_WS[1], 2), S(40, 2)))
    e(salu('s_mov_b32', S(SRD_WS[1] + 2), 32 * 8 * 48 * 2048))
    e(salu('s_mov_b32', S(SRD_WS[1] + 3), 0x20000))
    e(salu('s_mul_i32', sX[0], sB, 49152))
    e(salu('s_add_u32', sX[1], sX[0], 16384))
    e(salu('s_add_u32', sX[2], sX[0], 32768))
    e(salu('s_lshl_b32', sT0, sH, 2))
    e(salu('s_add_u32', sT0, sT0, sW))
    e(salu('s_lshl_b32', sWBASE, sT0, 8))
    e(salu('s_lshl_b32', sLDSW, sW, 12))
    e(salu('s_lshl_b32', sT0, sB, 3))
    e(salu('s_add_u32', sT0, sT0, sH))
    e(salu('s_lshl_b32', sKV, sT0, 17))
    e(salu('s_add_u32', sKV, sKV, sLDSW))
    e(salu('s_lshl_b32', sT1, sBLK, 7))
    e(salu('s_add_u32', sT0, sT0, sT1))
    e(salu('s_mul_i32', sOUT, sT0, 48 * 2048))
    e(salu('s_mul_i32', sT1, sW, 24576))
    e(salu('s_add_u32', sOUT, sOUT, sT1))

    def bfrag_reads(region):
        o = []
        o.append(valu('v_add_u32', vT[2], 4, vJ))
        o.append(valu('v_and_b32', vT[2], 15, vT[2]))
        o.append(valu('v_lshlrev_b32', vT[3], 10, vJ))
        o.append(valu('v_add_u32', vT[3], region, vT[3]))
        for ks in range(16):
            o.append(salu('s_add_u32', sKK, sB, ks))
            o.append(salu('s_and_b32', sT2, sKK, 3))
            o.append(salu('s_lshl_b32', sT2, sT2, 2))
            o.append(salu('s_bfe_u32', sKK, sKK, 0x20002))
            o.append(salu('s_lshl_b32', sKK, sKK, 8))
            ad = vT[4 + (ks & 1)]
            o.append(valu('v_add_u32', ad, sT2, vG))
            o.append(valu('v_xor_b32', ad, ad, vT[2]))
            o.append(valu('v_lshl_add_u32', ad, ad, 4, vT[3]))
            o.append(valu('v_add_u32', ad, sKK, ad))
            for mt in range(3):
                o.append(ds_read('ds_read_b128', xf(ks, mt), ad, mt * 16384))
        return o

    def gemm(is_q, bfrag, extra, pre_issued=0):
        wloads, xloads = gemm_phase(L, is_q, bfrag)
        for ks in range(pre_issued, 3):
            ex(xloads(ks))
            ex(wloads(ks))
        for t in range(8):
            ex(perms(0, t))
        ex(xloads(3))
        ex(wloads(3))
        for ks in range(16):
            for t in range(8):
                for mt in range(3):
                    e(mfma(acc(t, mt), tr(t), bfrag(ks, mt), acc(t, mt) if ks else 0))
                if ks + 1 < 16:
                    ex(perms((ks + 1) % 3, t))
            if ks + 4 < 16:
                ex(xloads(ks + 4))
                ex(wloads(ks + 4))
            if extra and ks in extra:
                ex(extra[ks])
        return wloads

    L.append(Ins('; ======== phase 1: Q projection', 'comment'))
    stamp()
    XREG = 112 * 1024
    e(valu('v_and_b32', vT[0], 63, V(0)))
    e(salu('s_mul_i32', sT1, sW, 12))
    for i in range(12):
        e(salu('s_add_u32', sT0, sT1, i))
        e(salu('s_add_u32', sT2, sT0, 4))
        e(salu('s_and_b32', sT2, sT2, 15))
        e(valu('v_xor_b32', vT[1 + (i & 1)], sT2, vT[0]))
        e(valu('v_lshlrev_b32', vT[1 + (i & 1)], 4, vT[1 + (i & 1)]))
        e(salu('s_lshl_b32', sT0, sT0, 10))
        e(salu('s_add_u32', 'm0', sT0, XREG))
        e(salu('s_add_u32', sT0, sT0, sX[0]))
        e(dma(vT[1 + (i & 1)], SRD_X, sT0, 0, tag='X'))
    wl1, _ = gemm_phase(L, True, None)
    ex(wl1(0))
    ex(wl1(1))
    e(wait_vm_tag('X'))
    e(barrier())
    ex(bfrag_reads(XREG))
    e(wait_all(vm=False, lgkm=True))
    e(barrier())
    extra = {}
    g = 0
    for c in range(5):
        for kind in 'KV':
            extra[g] = dma_group(kind, c)
            g += 1
    gemm(True, xf, extra, pre_issued=2)

    stamp()
    L.append(Ins('; ======== Q fragments', 'comment'))
    for qt in range(3):
        for s in range(4):
            for p in range(4):
                a0 = V(acc(2 * p, qt)[1] + s)
                a1 = V(acc(2 * p + 1, qt)[1] + s)
                e(valu('v_mul_f32', a0, sC, a0))
                e(valu('v_mul_f32', a1, sC, a1))
                e(valu('v_cvt_pk_bf16_f32', V(qf(qt, s)[1] + p), a0, a1))
    for r in range(4):
        e(valu('v_mov_b32', V(ONES[1] + r), 0x3f803f80))
    for i in range(108):
        e(valu('v_accvgpr_write_b32', A(OACC + i), 0))

    def kaddr(c):
        return [valu('v_add_u32', vKA[s], (c % 5) * 32768, vKB[s]) for s in range(4)]

    def vaddr(c):
        return [valu('v_add_u32', vVA[d], (c % 5) * 32768 + 16384, vVB[d]) for d in range(8)]

    def kreads():
        return [ds_read('ds_read_b128', kf(kt, s), vKA[s], kt * 4096) for kt in range(4) for s in range(4)]

    def vreads():
        o = []
        for ks in range(2):
            for dt in range(8):
                for hf in range(2):
                    o.append(ds_read('ds_read_b64_tr_b16', A(vf(dt, ks)[1] + 2 * hf, 2), vVA[dt], ks * 8192 + hf * 4096))
        return o

    def qk_mfmas(par, first):
        o = []
        for kt in range(4):
            for s in range(4):
                for qt in range(3):
                    C = sreg(par, kt, qt) if s else (0 if first else negm(qt))
                    o.append(mfma(sreg(par, kt, qt), kf(kt, s), qf(qt, s), C))
        return o

    def exp_ops(par):
        o = []
        for kt in range(4):
            for qt in range(3):
                b = sreg(par, kt, qt)[1]
                for r in range(4):
                    o.append(valu('v_exp_f32', V(b + r), V(b + r)))
                pb = pf(kt // 2, qt)[1] + (kt & 1) * 2
                o.append(valu('v_cvt_pk_bf16_f32', V(pb), V(b), V(b + 1)))
                o.append(valu('v_cvt_pk_bf16_f32', V(pb + 1), V(b + 2), V(b + 3)))
        return o

    def pv_mfmas():
        o = []
        for ks in range(2):
            for dt in range(8):
                for qt in range(3):
                    o.append(mfma(oacc(dt, qt), vf(dt, ks), pf(ks, qt), oacc(dt, qt)))
            for qt in range(3):
                o.append(mfma(lacc(qt), ONES, pf(ks, qt), lacc(qt)))
        return o

    def max_all(par):
        o = []
        b = SB[par]
        o.append(valu('v_max3_f32', vTMP[0], V(b), V(b + 1), V(b + 2)))
        for i in range(3, 47, 2):
            o.append(valu('v_max3_f32', vTMP[0], vTMP[0], V(b + i), V(b + i + 1)))
        o.append(valu('v_max_f32', vTMP[0], vTMP[0], V(b + 47)))
        return o

    def rebase(par, first):
        o = []
        o.append(valu('v_and_b32', vT[6], 63, V(0)))
        o.append(valu('v_xor_b32', vT[4], 16, vT[6]))
        o.append(valu('v_lshlrev_b32', vT[4], 2, vT[4]))
        o.append(valu('v_xor_b32', vT[5], 32, vT[6]))
        o.append(valu('v_lshlrev_b32', vT[5], 2, vT[5]))
        for qt in range(3):
            m = vT[qt]
            vals = [V(sreg(par, kt, qt)[1] + r) for kt in range(4) for r in range(4)]
            o.append(valu('v_max3_f32', m, vals[0], vals[1], vals[2]))
            for i in range(3, 15, 2):
                o.append(valu('v_max3_f32', m, m, vals[i], vals[i + 1]))
            o.append(valu('v_max_f32', m, m, vals[15]))
            o.append(ds_bperm(vT[7], vT[4], m))
            o.append(valu('v_max_f32', m, m, vT[7]))
            o.append(ds_bperm(vT[7], vT[5], m))
            o.append(valu('v_max_f32', m, m, vT[7]))
            if not first:
                o.append(valu('v_max_f32', m, 0, m))
            for v in vals:
                o.append(valu('v_sub_f32', v, v, m))
            if first:
                for r in range(4):
                    o.append(valu('v_sub_f32', V(negm(qt)[1] + r), 0, m))
            else:
                for r in range(4):
                    o.append(valu('v_sub_f32', V(negm(qt)[1] + r), V(negm(qt)[1] + r), m))
                o.append(valu('v_sub_f32', vT[7], 0, m))
                o.append(valu('v_exp_f32', vT[7], vT[7]))
                accs = [A(oacc(dt, qt)[1] + r) for dt in range(8) for r in range(4)] + [A(lacc(qt)[1] + r) for r in range(4)]
                for a_ in accs:
                    o.append(valu('v_accvgpr_read_b32', vT[6], a_))
                    o.append(valu('v_mul_f32', vT[6], vT[6], vT[7]))
                    o.append(valu('v_accvgpr_write_b32', a_, vT[6]))
        return o

    L.append(Ins('; ======== attention prologue', 'comment'))
    ex(kaddr(0))
    e(wait_vm_tag('K0'))
    e(barrier())
    ex(interleave(kreads(), []))
    ex(qk_mfmas(0, True))
    ex(rebase(0, True))

    wl4 = None
    for c in range(8):
        par = c & 1
        stamp()
        L.append(Ins(f'; ======== attention chunk {c}', 'comment'))
        if c < 7:
            ex(kaddr(c + 1))
            e(wait_vm_tag(f'K{c + 1}'))
        ex(vaddr(c))
        e(wait_vm_tag(f'V{c}'))
        e(wait_all(vm=False, lgkm=True))
        e(barrier())
        if 1 <= c <= 3:
            ex(dma_group('K', c + 4))
            ex(dma_group('V', c + 4))
        if c < 7:
            kr = kreads()
            ex(kr[:8])
            fill = kr[8:] + interleave(exp_ops(par), vreads())
            ex(interleave(qk_mfmas(par ^ 1, False), fill))
        else:
            ex(interleave(exp_ops(par), vreads()))
        if c == 6:
            e(salu('s_lshl_b32', sT0, sH, 19))
            e(salu('s_lshl_b32', sT1, sW, 8))
            e(salu('s_add_u32', sWBASE, sT0, sT1))
            wl4, _ = gemm_phase(L, False, None)
            ex(wl4(0))
        if c < 7:
            ex(interleave(pv_mfmas(), max_all(par ^ 1), start=12))
            e(Ins(f"v_cmp_lt_f32 vcc, {fmt(sTH)}, {fmt(vTMP[0])}", 'valu', regs(vTMP[0]) + regs(sTH), ['vcc'], {'op': 'v_cmp'}))
            e(nop(3))
            e(Ins(f's_cbranch_vccnz L_slow{c}', 'branch', ['vcc']))
            e(Ins(f'L_back{c}:', 'label'))
            sp = rebase(par ^ 1, False)
            sp.append(nop(7))
            sp.append(nop(7))
            sp.append(Ins(f's_branch L_back{c}', 'branch'))
            slow_paths.append((f'L_slow{c}', sp))
        else:
            ex(pv_mfmas())

    stamp()
    L.append(Ins('; ======== O normalise -> LDS', 'comment'))
    e(valu('v_add_u32', vT[2], 4, vJ))
    e(valu('v_and_b32', vT[2], 15, vT[2]))
    e(valu('v_lshrrev_b32', vT[3], 1, vG))
    e(valu('v_and_b32', vT[4], 1, vG))
    e(valu('v_lshlrev_b32', vT[4], 3, vT[4]))
    e(valu('v_lshl_add_u32', vT[4], vJ, 10, vT[4]))
    e(salu('s_lshl_b32', sT0, sW, 8))
    e(valu('v_add_u32', vT[4], sT0, vT[4]))
    OW = [V(4 + d) for d in range(8)]
    for dt in range(8):
        e(valu('v_add_u32', vT[5], 2 * dt, vT[3]))
        e(valu('v_xor_b32', vT[5], vT[5], vT[2]))
        e(valu('v_lshl_add_u32', OW[dt], vT[5], 4, vT[4]))
    tmp = SB[0]
    for qt in range(3):
        e(valu('v_accvgpr_read_b32', vT[6], A(lacc(qt)[1])))
        e(valu('v_rcp_f32', vT[6], vT[6]))
        for dt in range(8):
            b = tmp + ((qt * 8 + dt) % 8) * 6
            for r in range(4):
                e(valu('v_accvgpr_read_b32', V(b + r), A(oacc(dt, qt)[1] + r)))
                e(valu('v_mul_f32', V(b + r), V(b + r), vT[6]))
            e(valu('v_cvt_pk_bf16_f32', V(b + 4), V(b), V(b + 1)))
            e(valu('v_cvt_pk_bf16_f32', V(b + 5), V(b + 2), V(b + 3)))
            e(ds_write('ds_write_b64', OW[dt], V(b + 4, 2), qt * 16384))
    ex(wl4(1))
    e(wait_all(vm=False, lgkm=True))
    e(barrier())
    stamp()
    L.append(Ins('; ======== phase 4: output projection', 'comment'))
    ex(bfrag_reads(0))
    gemm(False, xf, None, pre_issued=2)

    stamp()
    L.append(Ins('; ======== store partials', 'comment'))
    e(valu('v_and_b32', vT[0], 63, V(0)))
    e(valu('v_lshlrev_b32', vT[0], 4, vT[0]))
    for t in range(8):
        for mt in range(3):
            i = t * 3 + mt
            if i and i % 4 == 0:
                e(salu('s_add_u32', sOUT, sOUT, 4096))
            e(buf_store(acc(t, mt), vT[0], SRD_WS, sOUT, (i % 4) * 1024))
    if STAMP:
        e(wait_all())
        stamp()
        e(salu('s_mov_b32', S(SRD_WS[1] + 2), 0x10000000))
        e(salu('s_lshl_b32', sT0, S(2), 2))
        e(salu('s_add_u32', sT0, sT0, sW))
        e(salu('s_lshl_b32', sT0, sT0, 7))
        e(salu('s_add_u32', sT0, sT0, 64 << 20))
        e(valu('v_mov_b32', V(1), 0))
        e(valu('v_mov_b32', V(3), 0))
        for i in range(nst[0]):
            e(valu('v_mov_b32', V(2), S(STREGS[i])))
            e(buf_store(V(2, 2), V(1), SRD_WS, sT0, i * 8))
            e(wait_all())
    e(Ins('L_exit:', 'label'))
    e(Ins('s_endpgm', 'other'))
    lines, stats = finalize(L)
    print('main', stats, len(lines), file=sys.stderr)
    for name, sp in slow_paths:
        lines.append(name + ':')
        l2, _ = finalize(sp, entry_pad=True)
        lines += l2
    return lines


def build_reduce():
    L = []
    e = L.append
    e(Ins('s_cmp_ge_u32 s2, 384', 'salu', ['s2'], ['scc']))
    e(Ins('s_cbranch_scc1 R_exit', 'branch', ['scc']))
    e(Ins('s_load_dwordx2 s[4:5], s[0:1], 80', 'smem', [], regs(S(4, 2))))
    e(Ins('s_load_dwordx2 s[6:7], s[0:1], 96', 'smem', [], regs(S(6, 2))))
    e(salu('s_mul_i32', S(20), S(2), 5462))
    e(salu('s_lshr_b32', S(20), S(20), 16))
    e(salu('s_mul_i32', S(21), S(20), 12))
    e(salu('s_sub_u32', S(21), S(2), S(21)))
    e(salu('s_mul_i32', S(26), S(21), 11))
    e(salu('s_lshr_b32', S(26), S(26), 5))
    e(salu('s_mul_i32', S(27), S(26), 3))
    e(salu('s_sub_u32', S(27), S(21), S(27)))
    e(valu('v_lshlrev_b32', V(3), 4, V(0)))
    e(salu('s_mul_i32', S(23), S(20), 8 * 98304))
    e(salu('s_mul_i32', S(28), S(26), 24576))
    e(salu('s_add_u32', S(23), S(23), S(28)))
    e(salu('s_lshl_b32', S(28), S(27), 10))
    e(salu('s_add_u32', S(23), S(23), S(28)))
    e(valu('v_and_b32', V(1), 15, V(0)))
    e(valu('v_lshrrev_b32', V(2), 4, V(0)))
    e(valu('v_lshlrev_b32', V(2), 6, V(2)))
    e(valu('v_lshl_add_u32', V(4), V(1), 11, V(2)))
    e(salu('s_and_b32', S(24), S(20), 15))
    e(salu('s_mul_i32', S(24), S(24), 48 * 2048))
    e(salu('s_lshr_b32', S(25), S(20), 4))
    e(salu('s_lshl_b32', S(25), S(25), 10))
    e(salu('s_add_u32', S(24), S(24), S(25)))
    e(salu('s_lshl_b32', S(25), S(27), 15))
    e(salu('s_add_u32', S(24), S(24), S(25)))
    e(salu('s_lshl_b32', S(25), S(26), 8))
    e(salu('s_add_u32', S(24), S(24), S(25)))
    e(Ins('s_waitcnt lgkmcnt(0)', 'other'))
    e(salu('s_mov_b64', S(8, 2), S(4, 2)))
    e(salu('s_mov_b32', S(10), 16 * 48 * 1024 * 2))
    e(salu('s_mov_b32', S(11), 0x20000))
    e(salu('s_mov_b64', S(12, 2), S(6, 2)))
    e(salu('s_mov_b32', S(14), 32 * 8 * 48 * 2048))
    e(salu('s_mov_b32', S(15), 0x20000))
    B0 = 8

    def ld(hh, slot):
        for t in range(8):
            e(salu('s_add_u32', S(29), S(23), hh * 98304 + t * 3072))
            e(buf_load(V(B0 + (slot * 8 + t) * 4, 4), V(3), S(12, 4), S(29)))

    def add(slot):
        for i in range(32):
            e(valu('v_add_f32', V(B0 + i), V(B0 + i), V(B0 + slot * 32 + i)))
    for hh in range(7):
        ld(hh, hh)
    add(1)
    ld(7, 1)
    for hh in range(2, 7):
        add(hh)
    add(1)
    for r in range(4):
        for p in range(4):
            e(valu('v_cvt_pk_bf16_f32', V(B0 + 64 + r * 4 + p), V(B0 + (2 * p) * 4 + r), V(B0 + (2 * p + 1) * 4 + r)))
        e(buf_store(V(B0 + 64 + r * 4, 4), V(4), S(8, 4), S(24), r * 16))
    e(Ins('R_exit:', 'label'))
    e(Ins('s_endpgm', 'other'))
    lines, stats = finalize(L)
    return lines


def kd(name, vgpr, accum, sgpr):
    return f""".amdhsa_kernel {name}
  .amdhsa_next_free_vgpr {vgpr}
  .amdhsa_next_free_sgpr {sgpr}
  .amdhsa_accum_offset {accum}
  .amdhsa_group_segment_fixed_size 0
  .amdhsa_kernarg_size 104
  .amdhsa_user_sgpr_count 2
  .amdhsa_user_sgpr_kernarg_segment_ptr 1
  .amdhsa_system_sgpr_workgroup_id_x 1
.end_amdhsa_kernel
"""


for wg in range(384 + 16):
    assert (wg * 5462) >> 16 == wg // 12
for rq in range(12):
    assert (rq * 11) >> 5 == rq // 3

main = build_main()
red = build_reduce()
txt = HDR
txt += f'; @launch kernel={NAME}_kernel grid=(256,1,1) block=(256,1,1) lds=163840\n'
txt += '; @launch kernel=reduce_kernel grid=(384,1,1) block=(64,1,1) lds=0\n'
txt += '.amdgcn_target "amdgcn-amd-amdhsa--gfx950"\n.text\n'
txt += f'.globl {NAME}_kernel\n.p2align 8\n.type {NAME}_kernel,@function\n{NAME}_kernel:\n'
txt += '\n'.join(main) + '\n'
txt += '.globl reduce_kernel\n.p2align 8\n.type reduce_kernel,@function\nreduce_kernel:\n'
txt += '\n'.join(red) + '\n'
txt += '.section .rodata,"a"\n.p2align 6\n'
txt += kd(f'{NAME}_kernel', 512, 256, 96)
txt += '.p2align 6\n'
txt += kd('reduce_kernel', 232, 232, 32)
open(OUT, 'w').write(txt)
print('wrote', OUT, len(txt), file=sys.stderr)
```

```python
import sys
import struct
from asmlib import *

NAME = 'concat_heads__gqa_block_cached__gqa_block_cached__near_ridge'
OUT = sys.argv[1] if len(sys.argv) > 1 else f'cdna_kernels/{NAME}.s'

HDR = open(f'cdna_kernels/{NAME}.s.ref').read().split('; Override launch')[0]


def f32bits(x):
    return struct.unpack('<I', struct.pack('<f', x))[0]


CSCALE = f32bits(1.4426950408889634 / (128.0 ** 0.5))
THRESH = f32bits(16.0)

sPTR = 16
SRD_X, SRD_K, SRD_V, SRD_WQ, SRD_WO, SRD_WS = S(44, 4), S(48, 4), S(52, 4), S(56, 4), S(60, 4), S(64, 4)
sH, sB, sBLK, sW = S(70), S(71), S(72), S(73)
sX = [S(74), S(75), S(76)]
sWOFF = S(77)
sKV = S(78)
sT0, sT1 = S(79), S(80)
sSELLO, sSELHI = S(82), S(83)
sLDSW = S(84)
sOUT = S(85)
sC = S(86)
sTH = S(87)
sWBASE = S(88)
sKK = S(89)
sT2 = S(92)

vJ, vG = V(1), V(2)
vOFFWQ0 = V(3)
vBF = V(4)
vBB = V(5)
vBA = [V(6), V(7)]
vOFFK = [V(12 + i) for i in range(4)]
vOFFV = [V(16 + i) for i in range(2)]
vKB = [V(18 + s) for s in range(4)]
vVB = [V(22 + d) for d in range(8)]
vOFFWO = [V(30), V(31)]
TR = 32
RAW = 64
NB = 6
NEGM = 32
ONES = V(44, 4)
vKA = [V(48 + s) for s in range(4)]
vVA = [V(52 + d) for d in range(8)]
vTMP = [V(60 + i) for i in range(4)]
SB = [64, 112]
QF = 160
PF = 224
vT = [V(248 + i) for i in range(8)]
ACC = 0
XB = 96
OACC = 0
LACC = 96
KF = 128
VF = 192


def acc(t, mt):
    return A(ACC + (t * 3 + mt) * 4, 4)


def tr(t):
    return V(TR + t * 4, 4)


def raw(buf, e):
    return V(RAW + buf * 32 + e * 4, 4)


def xf(ks, mt):
    return A(XB + ((ks % 3) * 3 + mt) * 4, 4)


def sreg(par, kt, qt):
    return V(SB[par] + (kt * 3 + qt) * 4, 4)


def qf(qt, s):
    return V(QF + (qt * 4 + s) * 4, 4)


def pf(ks, qt):
    return V(PF + (ks * 3 + qt) * 4, 4)


def negm(qt):
    return V(NEGM + qt * 4, 4)


def oacc(dt, qt):
    return A(OACC + (dt * 3 + qt) * 4, 4)


def lacc(qt):
    return A(LACC + qt * 4, 4)


def kf(kt, s):
    return A(KF + (kt * 4 + s) * 4, 4)


def vf(dt, ks):
    return A(VF + (dt * 2 + ks) * 4, 4)


def perms(buf, t):
    o = []
    for p in range(4):
        lo = V(RAW + buf * 32 + (2 * p) * 4 + t // 2)
        hi = V(RAW + buf * 32 + (2 * p + 1) * 4 + t // 2)
        o.append(valu('v_perm_b32', V(TR + t * 4 + p), hi, lo, sSELHI if t & 1 else sSELLO))
    return o


def dma_group(kind, c):
    slot = (c % 5) * 32768 + (16384 if kind == 'V' else 0)
    o = [salu('s_add_u32', 'm0', sLDSW, slot),
         salu('s_add_u32', sT0, sKV, c * 16384)]
    for i in range(4):
        voff = vOFFK[i] if kind == 'K' else vOFFV[i & 1]
        o.append(dma(voff, SRD_K if kind == 'K' else SRD_V, sT0, i * 1024, tag=f'{kind}{c}'))
    return o


def gemm_phase(L, is_q, bfrag, extra=None):
    def wloads(ks):
        o = []
        buf = (ks + (0 if is_q else 3)) % NB
        o.append(salu('s_add_u32', sKK, sB, ks))
        o.append(salu('s_and_b32', sKK, sKK, 15))
        o.append(salu('s_lshl_b32', sKK, sKK, 18 if is_q else 15))
        o.append(salu('s_add_u32', sWOFF, sWBASE, sKK))
        if is_q:
            for e in range(8):
                if e:
                    o.append(salu('s_add_u32', sWOFF, sWOFF, 8192))
                o.append(buf_load(raw(buf, e), vOFFWQ0, SRD_WQ, sWOFF))
        else:
            for e in range(8):
                o.append(buf_load(raw(buf, e), vOFFWO[e >> 2], SRD_WO, sWOFF, (e & 3) * 1024))
        return o

    def xloads(ks):
        return []

    return wloads, xloads


import os
STAMP = int(os.environ.get('STAMP', '0'))
STREGS = [3, 4, 5, 6, 7, 8, 9, 10, 11, 12, 13, 14, 15, 42, 43, 68]


def build_main():
    L = []
    e = L.append
    ex = L.extend
    slow_paths = []
    nst = [0]

    def stamp():
        if not STAMP:
            return
        e(wait_all(vm=False, lgkm=True))
        e(Ins('s_memtime s[90:91]', 'smem', [], ['s90', 's91']))
        e(Ins('s_waitcnt lgkmcnt(0)', 'other'))
        e(salu('s_mov_b32', S(STREGS[nst[0]]), S(90)))
        nst[0] += 1

    e(Ins('s_cmp_ge_u32 s2, 256', 'salu', ['s2'], ['scc']))
    e(Ins('s_cbranch_scc1 L_exit', 'branch', ['scc']))
    e(Ins('s_load_dwordx16 s[16:31], s[0:1], 0', 'smem', [], regs(S(16, 16))))
    e(Ins('s_load_dwordx8 s[32:39], s[0:1], 64', 'smem', [], regs(S(32, 8))))
    e(Ins('s_load_dwordx2 s[40:41], s[0:1], 96', 'smem', [], regs(S(40, 2))))
    e(salu('s_and_b32', sH, S(2), 7))
    e(salu('s_lshr_b32', sT0, S(2), 3))
    e(salu('s_and_b32', sB, sT0, 15))
    e(salu('s_lshr_b32', sBLK, sT0, 4))
    e(valu('v_lshrrev_b32', vT[0], 6, V(0)))
    e(valu('v_readfirstlane_b32', sW, vT[0]))
    e(valu('v_and_b32', vJ, 15, V(0)))
    e(valu('v_bfe_u32', vG, V(0), 4, 2))
    e(salu('s_mov_b32', sSELLO, 0x05040100))
    e(salu('s_mov_b32', sSELHI, 0x07060302))
    e(salu('s_mov_b32', sC, CSCALE))
    e(salu('s_mov_b32', sTH, THRESH))
    e(valu('v_lshlrev_b32', vT[0], 4, vJ))
    e(valu('v_lshl_add_u32', vOFFWQ0, vG, 16, vT[0]))
    e(valu('v_add_u32', vBF, 4, vJ))
    e(valu('v_and_b32', vBF, 15, vBF))
    e(valu('v_lshlrev_b32', vBB, 10, vJ))
    e(valu('v_lshl_add_u32', vOFFWO[0], vG, 13, vT[0]))
    e(valu('v_add_u32', vOFFWO[1], 4096, vOFFWO[0]))
    for i in range(4):
        e(valu('v_add_u32', vT[1], 4 * i + 4, vG))
        e(valu('v_and_b32', vT[1], 15, vT[1]))
        e(valu('v_xor_b32', vT[1], vT[1], vJ))
        e(valu('v_lshlrev_b32', vT[1], 4, vT[1]))
        e(valu('v_lshl_add_u32', vOFFK[i], vG, 8, vT[1]))
    for i in range(2):
        e(valu('v_add_u32', vT[1], 4 * i, vG))
        e(valu('v_lshlrev_b32', vT[1], 1, vT[1]))
        e(valu('v_xor_b32', vT[1], vT[1], vJ))
        e(valu('v_lshlrev_b32', vT[1], 4, vT[1]))
        e(valu('v_lshl_add_u32', vOFFV[i], vG, 8, vT[1]))
    e(valu('v_add_u32', vT[2], 4, vJ))
    e(valu('v_and_b32', vT[2], 15, vT[2]))
    for s in range(4):
        e(valu('v_lshl_add_u32', vT[1], vG, 2, s))
        e(valu('v_xor_b32', vT[1], vT[1], vT[2]))
        e(valu('v_lshlrev_b32', vT[1], 4, vT[1]))
        e(valu('v_lshl_add_u32', vKB[s], vJ, 8, vT[1]))
    e(valu('v_lshrrev_b32', vT[3], 2, vJ))
    e(valu('v_lshl_add_u32', vT[4], vG, 2, vT[3]))
    e(valu('v_and_b32', vT[5], 7, vT[4]))
    e(valu('v_and_b32', vT[6], 3, vJ))
    e(valu('v_lshlrev_b32', vT[6], 3, vT[6]))
    e(valu('v_lshl_add_u32', vT[6], vT[4], 8, vT[6]))
    for dt in range(8):
        e(valu('v_xor_b32', vT[1], dt, vT[5]))
        e(valu('v_lshl_add_u32', vVB[dt], vT[1], 5, vT[6]))
    e(Ins('s_waitcnt lgkmcnt(0)', 'other'))
    e(Ins(f's_cmp_eq_u32 {fmt(sBLK)}, 0', 'salu', regs(sBLK), ['scc']))
    for srd, pa, size in ((SRD_X, 16, 786432), (SRD_K, 18, 16777216), (SRD_V, 20, 16777216),
                          (SRD_WQ, 22, 4194304), (SRD_WO, 24, 4194304)):
        e(Ins(f's_cselect_b64 s[{srd[1]}:{srd[1] + 1}], s[{pa}:{pa + 1}], s[{pa + 10}:{pa + 11}]', 'salu',
              ['scc'] + regs(S(pa, 2)) + regs(S(pa + 10, 2)), regs(S(srd[1], 2))))
        e(salu('s_mov_b32', S(srd[1] + 2), size))
        e(salu('s_mov_b32', S(srd[1] + 3), 0x20000))
    e(salu('s_mov_b64', S(SRD_WS[1], 2), S(40, 2)))
    e(salu('s_mov_b32', S(SRD_WS[1] + 2), 32 * 8 * 48 * 2048))
    e(salu('s_mov_b32', S(SRD_WS[1] + 3), 0x20000))
    e(salu('s_mul_i32', sX[0], sB, 49152))
    e(salu('s_add_u32', sX[1], sX[0], 16384))
    e(salu('s_add_u32', sX[2], sX[0], 32768))
    e(salu('s_lshl_b32', sT0, sH, 2))
    e(salu('s_add_u32', sT0, sT0, sW))
    e(salu('s_lshl_b32', sWBASE, sT0, 8))
    e(salu('s_lshl_b32', sLDSW, sW, 12))
    e(salu('s_lshl_b32', sT0, sB, 3))
    e(salu('s_add_u32', sT0, sT0, sH))
    e(salu('s_lshl_b32', sKV, sT0, 17))
    e(salu('s_add_u32', sKV, sKV, sLDSW))
    e(salu('s_lshl_b32', sT1, sBLK, 7))
    e(salu('s_add_u32', sT0, sT0, sT1))
    e(salu('s_mul_i32', sOUT, sT0, 48 * 2048))
    e(salu('s_mul_i32', sT1, sW, 24576))
    e(salu('s_add_u32', sOUT, sOUT, sT1))

    def bfrag_reads(region, ks):
        o = []
        o.append(salu('s_add_u32', sKK, sB, ks))
        o.append(salu('s_and_b32', sT2, sKK, 3))
        o.append(salu('s_lshl_b32', sT2, sT2, 2))
        o.append(salu('s_bfe_u32', sKK, sKK, 0x20002))
        o.append(salu('s_lshl_b32', sKK, sKK, 8))
        o.append(salu('s_add_u32', sKK, sKK, region))
        ad = vBA[ks & 1]
        o.append(valu('v_add_u32', ad, sT2, vG))
        o.append(valu('v_xor_b32', ad, ad, vBF))
        o.append(valu('v_lshl_add_u32', ad, ad, 4, vBB))
        o.append(valu('v_add_u32', ad, sKK, ad))
        for mt in range(3):
            o.append(ds_read('ds_read_b128', xf(ks, mt), ad, mt * 16384))
        return o

    def gemm(is_q, region, extra, pre_issued=0):
        wloads, _ = gemm_phase(L, is_q, None)
        for ks in range(pre_issued, NB):
            ex(wloads(ks))
        ex(bfrag_reads(region, 0))
        ex(bfrag_reads(region, 1))
        boff = 0 if is_q else 3
        for t in range(8):
            ex(perms(boff, t))
        ex(wloads(NB))
        for ks in range(16):
            if ks + 2 < 16:
                ex(bfrag_reads(region, ks + 2))
            for t in range(8):
                for mt in range(3):
                    e(mfma(acc(t, mt), tr(t), xf(ks, mt), acc(t, mt) if ks else 0))
                if ks + 1 < 16:
                    ex(perms((ks + 1 + boff) % NB, t))
            if ks + 1 + NB < 16:
                ex(wloads(ks + 1 + NB))
            if extra and ks in extra:
                ex(extra[ks])

    L.append(Ins('; ======== phase 1: Q projection', 'comment'))
    stamp()
    XREG = 112 * 1024
    XT = [V(32), V(33), V(34)]
    e(valu('v_and_b32', XT[0], 63, V(0)))
    e(salu('s_mul_i32', sT1, sW, 12))
    for i in range(12):
        e(salu('s_add_u32', sT0, sT1, i))
        e(salu('s_add_u32', sT2, sT0, 4))
        e(salu('s_and_b32', sT2, sT2, 15))
        e(valu('v_xor_b32', XT[1 + (i & 1)], sT2, XT[0]))
        e(valu('v_lshlrev_b32', XT[1 + (i & 1)], 4, XT[1 + (i & 1)]))
        e(salu('s_lshl_b32', sT0, sT0, 10))
        e(salu('s_add_u32', 'm0', sT0, XREG))
        e(salu('s_add_u32', sT0, sT0, sX[0]))
        e(dma(XT[1 + (i & 1)], SRD_X, sT0, 0, tag='X'))
    wl1, _ = gemm_phase(L, True, None)
    for ks in range(5):
        ex(wl1(ks))
    e(wait_vm_tag('X'))
    e(barrier())
    extra = {}
    groups = [('K', 0), ('V', 0), ('K', 1), ('V', 1), ('K', 2), ('V', 2), ('K', 3)]
    for g, (kind, c) in enumerate(groups):
        extra[2 * g] = dma_group(kind, c)
    gemm(True, XREG, extra, pre_issued=5)

    stamp()
    L.append(Ins('; ======== Q fragments', 'comment'))
    n = 0
    for qt in range(3):
        for s in range(4):
            for p in range(4):
                a0 = V(208 + (n % 8) * 2)
                a1 = V(209 + (n % 8) * 2)
                n += 1
                e(valu('v_accvgpr_read_b32', a0, A(acc(2 * p, qt)[1] + s)))
                e(valu('v_accvgpr_read_b32', a1, A(acc(2 * p + 1, qt)[1] + s)))
                e(valu('v_mul_f32', a0, sC, a0))
                e(valu('v_mul_f32', a1, sC, a1))
                e(valu('v_cvt_pk_bf16_f32', V(qf(qt, s)[1] + p), a0, a1))
    for r in range(4):
        e(valu('v_mov_b32', V(ONES[1] + r), 0x3f803f80))
    for i in range(108):
        e(valu('v_accvgpr_write_b32', A(OACC + i), 0))

    def kaddr(c):
        return [valu('v_add_u32', vKA[s], (c % 5) * 32768, vKB[s]) for s in range(4)]

    def vaddr(c):
        return [valu('v_add_u32', vVA[d], (c % 5) * 32768 + 16384, vVB[d]) for d in range(8)]

    def kreads():
        return [ds_read('ds_read_b128', kf(kt, s), vKA[s], kt * 4096) for kt in range(4) for s in range(4)]

    def vreads():
        o = []
        for ks in range(2):
            for dt in range(8):
                for hf in range(2):
                    o.append(ds_read('ds_read_b64_tr_b16', A(vf(dt, ks)[1] + 2 * hf, 2), vVA[dt], ks * 8192 + hf * 4096))
        return o

    def qk_mfmas(par, first):
        o = []
        for kt in range(4):
            for s in range(4):
                for qt in range(3):
                    C = sreg(par, kt, qt) if s else (0 if first else negm(qt))
                    o.append(mfma(sreg(par, kt, qt), kf(kt, s), qf(qt, s), C))
        return o

    def exp_ops(par):
        o = []
        for kt in range(4):
            for qt in range(3):
                b = sreg(par, kt, qt)[1]
                for r in range(4):
                    o.append(valu('v_exp_f32', V(b + r), V(b + r)))
                pb = pf(kt // 2, qt)[1] + (kt & 1) * 2
                o.append(valu('v_cvt_pk_bf16_f32', V(pb), V(b), V(b + 1)))
                o.append(valu('v_cvt_pk_bf16_f32', V(pb + 1), V(b + 2), V(b + 3)))
        return o

    def pv_mfmas():
        o = []
        for ks in range(2):
            for dt in range(8):
                for qt in range(3):
                    o.append(mfma(oacc(dt, qt), vf(dt, ks), pf(ks, qt), oacc(dt, qt)))
            for qt in range(3):
                o.append(mfma(lacc(qt), ONES, pf(ks, qt), lacc(qt)))
        return o

    def max_all(par):
        o = []
        b = SB[par]
        o.append(valu('v_max3_f32', vTMP[0], V(b), V(b + 1), V(b + 2)))
        for i in range(3, 47, 2):
            o.append(valu('v_max3_f32', vTMP[0], vTMP[0], V(b + i), V(b + i + 1)))
        o.append(valu('v_max_f32', vTMP[0], vTMP[0], V(b + 47)))
        return o

    def rebase(par, first):
        o = []
        o.append(valu('v_and_b32', vT[6], 63, V(0)))
        o.append(valu('v_xor_b32', vT[4], 16, vT[6]))
        o.append(valu('v_lshlrev_b32', vT[4], 2, vT[4]))
        o.append(valu('v_xor_b32', vT[5], 32, vT[6]))
        o.append(valu('v_lshlrev_b32', vT[5], 2, vT[5]))
        for qt in range(3):
            m = vT[qt]
            vals = [V(sreg(par, kt, qt)[1] + r) for kt in range(4) for r in range(4)]
            o.append(valu('v_max3_f32', m, vals[0], vals[1], vals[2]))
            for i in range(3, 15, 2):
                o.append(valu('v_max3_f32', m, m, vals[i], vals[i + 1]))
            o.append(valu('v_max_f32', m, m, vals[15]))
            o.append(ds_bperm(vT[7], vT[4], m))
            o.append(valu('v_max_f32', m, m, vT[7]))
            o.append(ds_bperm(vT[7], vT[5], m))
            o.append(valu('v_max_f32', m, m, vT[7]))
            if not first:
                o.append(valu('v_max_f32', m, 0, m))
            for v in vals:
                o.append(valu('v_sub_f32', v, v, m))
            if first:
                for r in range(4):
                    o.append(valu('v_sub_f32', V(negm(qt)[1] + r), 0, m))
            else:
                for r in range(4):
                    o.append(valu('v_sub_f32', V(negm(qt)[1] + r), V(negm(qt)[1] + r), m))
                o.append(valu('v_sub_f32', vT[7], 0, m))
                o.append(valu('v_exp_f32', vT[7], vT[7]))
                accs = [A(oacc(dt, qt)[1] + r) for dt in range(8) for r in range(4)] + [A(lacc(qt)[1] + r) for r in range(4)]
                for a_ in accs:
                    o.append(valu('v_accvgpr_read_b32', vT[6], a_))
                    o.append(valu('v_mul_f32', vT[6], vT[6], vT[7]))
                    o.append(valu('v_accvgpr_write_b32', a_, vT[6]))
        return o

    L.append(Ins('; ======== attention prologue', 'comment'))
    ex(kaddr(0))
    e(wait_vm_tag('K0'))
    e(wait_all(vm=False, lgkm=True))
    e(barrier())
    ex(dma_group('V', 3))
    ex(dma_group('K', 4))
    ex(dma_group('V', 4))
    ex(interleave(kreads(), []))
    ex(qk_mfmas(0, True))
    ex(rebase(0, True))

    wl4 = None
    for c in range(8):
        par = c & 1
        stamp()
        L.append(Ins(f'; ======== attention chunk {c}', 'comment'))
        if c < 7:
            ex(kaddr(c + 1))
            e(wait_vm_tag(f'K{c + 1}'))
        ex(vaddr(c))
        e(wait_vm_tag(f'V{c}'))
        e(wait_all(vm=False, lgkm=True))
        e(barrier())
        if 1 <= c <= 3:
            ex(dma_group('K', c + 4))
            ex(dma_group('V', c + 4))
        if c < 7:
            kr = kreads()
            ex(kr[:8])
            fill = kr[8:] + interleave(exp_ops(par), vreads())
            ex(interleave(qk_mfmas(par ^ 1, False), fill))
        else:
            ex(interleave(exp_ops(par), vreads()))
        if c == 6:
            e(salu('s_lshl_b32', sT0, sH, 19))
            e(salu('s_lshl_b32', sT1, sW, 8))
            e(salu('s_add_u32', sWBASE, sT0, sT1))
            wl4, _ = gemm_phase(L, False, None)
            ex(wl4(0))
            ex(wl4(1))
        if c < 7:
            ex(interleave(pv_mfmas(), max_all(par ^ 1), start=12))
            e(Ins(f"v_cmp_lt_f32 vcc, {fmt(sTH)}, {fmt(vTMP[0])}", 'valu', regs(vTMP[0]) + regs(sTH), ['vcc'], {'op': 'v_cmp'}))
            e(nop(3))
            e(Ins(f's_cbranch_vccnz L_slow{c}', 'branch', ['vcc']))
            e(Ins(f'L_back{c}:', 'label'))
            sp = rebase(par ^ 1, False)
            sp.append(nop(7))
            sp.append(nop(7))
            sp.append(Ins(f's_branch L_back{c}', 'branch'))
            slow_paths.append((f'L_slow{c}', sp))
        else:
            ex(pv_mfmas())

    stamp()
    L.append(Ins('; ======== O normalise -> LDS', 'comment'))
    ex(wl4(2))
    ex(wl4(3))
    ex(wl4(4))
    nT = [V(32 + i) for i in range(8)]
    e(valu('v_lshrrev_b32', nT[3], 1, vG))
    e(valu('v_and_b32', nT[4], 1, vG))
    e(valu('v_lshlrev_b32', nT[4], 3, nT[4]))
    e(valu('v_add_u32', nT[4], nT[4], vBB))
    e(salu('s_lshl_b32', sT0, sW, 8))
    e(valu('v_add_u32', nT[4], sT0, nT[4]))
    OW = [V(48 + d) for d in range(8)]
    for dt in range(8):
        e(valu('v_add_u32', nT[5], 2 * dt, nT[3]))
        e(valu('v_xor_b32', nT[5], nT[5], vBF))
        e(valu('v_lshl_add_u32', OW[dt], nT[5], 4, nT[4]))
    for qt in range(3):
        e(valu('v_accvgpr_read_b32', nT[6], A(lacc(qt)[1])))
        e(valu('v_rcp_f32', nT[6], nT[6]))
        for dt in range(8):
            b = 128 + ((qt * 8 + dt) % 5) * 6
            for r in range(4):
                e(valu('v_accvgpr_read_b32', V(b + r), A(oacc(dt, qt)[1] + r)))
                e(valu('v_mul_f32', V(b + r), V(b + r), nT[6]))
            e(valu('v_cvt_pk_bf16_f32', V(b + 4), V(b), V(b + 1)))
            e(valu('v_cvt_pk_bf16_f32', V(b + 5), V(b + 2), V(b + 3)))
            e(ds_write('ds_write_b64', OW[dt], V(b + 4, 2), qt * 16384))
    e(wait_all(vm=False, lgkm=True))
    e(barrier())
    stamp()
    L.append(Ins('; ======== phase 4: output projection', 'comment'))
    gemm(False, 0, None, pre_issued=5)

    stamp()
    L.append(Ins('; ======== store partials', 'comment'))
    e(valu('v_and_b32', vBA[0], 63, V(0)))
    e(valu('v_lshlrev_b32', vBA[0], 4, vBA[0]))
    for t in range(8):
        for mt in range(3):
            i = t * 3 + mt
            if i and i % 4 == 0:
                e(salu('s_add_u32', sOUT, sOUT, 4096))
            e(buf_store(acc(t, mt), vBA[0], SRD_WS, sOUT, (i % 4) * 1024))
    if STAMP:
        e(wait_all())
        stamp()
        e(salu('s_mov_b32', S(SRD_WS[1] + 2), 0x10000000))
        e(salu('s_lshl_b32', sT0, S(2), 2))
        e(salu('s_add_u32', sT0, sT0, sW))
        e(salu('s_lshl_b32', sT0, sT0, 7))
        e(salu('s_add_u32', sT0, sT0, 64 << 20))
        e(valu('v_mov_b32', V(1), 0))
        e(valu('v_mov_b32', V(3), 0))
        for i in range(nst[0]):
            e(valu('v_mov_b32', V(2), S(STREGS[i])))
            e(buf_store(V(2, 2), V(1), SRD_WS, sT0, i * 8))
            e(wait_all())
    e(Ins('L_exit:', 'label'))
    e(Ins('s_endpgm', 'other'))
    lines, stats = finalize(L)
    print('main', stats, len(lines), file=sys.stderr)
    for name, sp in slow_paths:
        lines.append(name + ':')
        l2, _ = finalize(sp, entry_pad=True)
        lines += l2
    return lines


def build_reduce():
    L = []
    e = L.append
    e(Ins('s_cmp_ge_u32 s2, 384', 'salu', ['s2'], ['scc']))
    e(Ins('s_cbranch_scc1 R_exit', 'branch', ['scc']))
    e(Ins('s_load_dwordx2 s[4:5], s[0:1], 80', 'smem', [], regs(S(4, 2))))
    e(Ins('s_load_dwordx2 s[6:7], s[0:1], 96', 'smem', [], regs(S(6, 2))))
    e(salu('s_mul_i32', S(20), S(2), 5462))
    e(salu('s_lshr_b32', S(20), S(20), 16))
    e(salu('s_mul_i32', S(21), S(20), 12))
    e(salu('s_sub_u32', S(21), S(2), S(21)))
    e(salu('s_mul_i32', S(26), S(21), 11))
    e(salu('s_lshr_b32', S(26), S(26), 5))
    e(salu('s_mul_i32', S(27), S(26), 3))
    e(salu('s_sub_u32', S(27), S(21), S(27)))
    e(valu('v_lshlrev_b32', V(3), 4, V(0)))
    e(salu('s_mul_i32', S(23), S(20), 8 * 98304))
    e(salu('s_mul_i32', S(28), S(26), 24576))
    e(salu('s_add_u32', S(23), S(23), S(28)))
    e(salu('s_lshl_b32', S(28), S(27), 10))
    e(salu('s_add_u32', S(23), S(23), S(28)))
    e(valu('v_and_b32', V(1), 15, V(0)))
    e(valu('v_lshrrev_b32', V(2), 4, V(0)))
    e(valu('v_lshlrev_b32', V(2), 6, V(2)))
    e(valu('v_lshl_add_u32', V(4), V(1), 11, V(2)))
    e(salu('s_and_b32', S(24), S(20), 15))
    e(salu('s_mul_i32', S(24), S(24), 48 * 2048))
    e(salu('s_lshr_b32', S(25), S(20), 4))
    e(salu('s_lshl_b32', S(25), S(25), 10))
    e(salu('s_add_u32', S(24), S(24), S(25)))
    e(salu('s_lshl_b32', S(25), S(27), 15))
    e(salu('s_add_u32', S(24), S(24), S(25)))
    e(salu('s_lshl_b32', S(25), S(26), 8))
    e(salu('s_add_u32', S(24), S(24), S(25)))
    e(Ins('s_waitcnt lgkmcnt(0)', 'other'))
    e(salu('s_mov_b64', S(8, 2), S(4, 2)))
    e(salu('s_mov_b32', S(10), 16 * 48 * 1024 * 2))
    e(salu('s_mov_b32', S(11), 0x20000))
    e(salu('s_mov_b64', S(12, 2), S(6, 2)))
    e(salu('s_mov_b32', S(14), 32 * 8 * 48 * 2048))
    e(salu('s_mov_b32', S(15), 0x20000))
    B0 = 8

    def ld(hh, slot):
        for t in range(8):
            e(salu('s_add_u32', S(29), S(23), hh * 98304 + t * 3072))
            e(buf_load(V(B0 + (slot * 8 + t) * 4, 4), V(3), S(12, 4), S(29)))

    def add(slot):
        for i in range(32):
            e(valu('v_add_f32', V(B0 + i), V(B0 + i), V(B0 + slot * 32 + i)))
    for hh in range(7):
        ld(hh, hh)
    add(1)
    ld(7, 1)
    for hh in range(2, 7):
        add(hh)
    add(1)
    for r in range(4):
        for p in range(4):
            e(valu('v_cvt_pk_bf16_f32', V(B0 + 64 + r * 4 + p), V(B0 + (2 * p) * 4 + r), V(B0 + (2 * p + 1) * 4 + r)))
        e(buf_store(V(B0 + 64 + r * 4, 4), V(4), S(8, 4), S(24), r * 16))
    e(Ins('R_exit:', 'label'))
    e(Ins('s_endpgm', 'other'))
    lines, stats = finalize(L)
    return lines


def kd(name, vgpr, accum, sgpr):
    return f""".amdhsa_kernel {name}
  .amdhsa_next_free_vgpr {vgpr}
  .amdhsa_next_free_sgpr {sgpr}
  .amdhsa_accum_offset {accum}
  .amdhsa_group_segment_fixed_size 0
  .amdhsa_kernarg_size 104
  .amdhsa_user_sgpr_count 2
  .amdhsa_user_sgpr_kernarg_segment_ptr 1
  .amdhsa_system_sgpr_workgroup_id_x 1
.end_amdhsa_kernel
"""


for wg in range(384 + 16):
    assert (wg * 5462) >> 16 == wg // 12
for rq in range(12):
    assert (rq * 11) >> 5 == rq // 3

main = build_main()
red = build_reduce()
txt = HDR
txt += f'; @launch kernel={NAME}_kernel grid=(256,1,1) block=(256,1,1) lds=163840\n'
txt += '; @launch kernel=reduce_kernel grid=(384,1,1) block=(64,1,1) lds=0\n'
txt += '.amdgcn_target "amdgcn-amd-amdhsa--gfx950"\n.text\n'
txt += f'.globl {NAME}_kernel\n.p2align 8\n.type {NAME}_kernel,@function\n{NAME}_kernel:\n'
txt += '\n'.join(main) + '\n'
txt += '.globl reduce_kernel\n.p2align 8\n.type reduce_kernel,@function\nreduce_kernel:\n'
txt += '\n'.join(red) + '\n'
txt += '.section .rodata,"a"\n.p2align 6\n'
txt += kd(f'{NAME}_kernel', 512, 256, 96)
txt += '.p2align 6\n'
txt += kd('reduce_kernel', 232, 232, 32)
open(OUT, 'w').write(txt)
print('wrote', OUT, len(txt), file=sys.stderr)
```

```python
import sys
import struct
from asmlib import *
import os
KVFLAGS = os.environ.get('KVFLAGS', 'nt')
WFLAGS = os.environ.get('WFLAGS', '')

NAME = 'concat_heads__gqa_block_cached__gqa_block_cached__near_ridge'
OUT = sys.argv[1] if len(sys.argv) > 1 else f'cdna_kernels/{NAME}.s'

HDR = open(f'cdna_kernels/{NAME}.s.ref').read().split('; Override launch')[0]


def f32bits(x):
    return struct.unpack('<I', struct.pack('<f', x))[0]


CSCALE = f32bits(1.4426950408889634 / (128.0 ** 0.5))
THRESH = f32bits(16.0)

sPTR = 16
SRD_X, SRD_K, SRD_V, SRD_WQ, SRD_WO, SRD_WS = S(44, 4), S(48, 4), S(52, 4), S(56, 4), S(60, 4), S(64, 4)
sH, sB, sBLK, sW = S(70), S(71), S(72), S(73)
sX = [S(74), S(75), S(76)]
sWOFF = S(77)
sKV = S(78)
sT0, sT1 = S(79), S(80)
sSELLO, sSELHI = S(82), S(83)
sLDSW = S(84)
sOUT = S(85)
sC = S(86)
sTH = S(87)
sWBASE = S(88)
sKK = S(89)
sT2 = S(92)

vJ, vG = V(1), V(2)
vOFFWQ0 = V(3)
vBF = V(4)
vBB = V(5)
vBA = [V(6), V(7)]
vOFFK = [V(12 + i) for i in range(4)]
vOFFV = [V(16 + i) for i in range(2)]
vKB = [V(18 + s) for s in range(4)]
vVB = [V(22 + d) for d in range(8)]
vOFFWO = [V(30), V(31)]
TR = 32
RAW = 64
NB = 6
NEGM = 32
ONES = V(44, 4)
vKA = [V(48 + s) for s in range(4)]
vVA = [V(52 + d) for d in range(8)]
vTMP = [V(60 + i) for i in range(4)]
SB = [64, 112]
QF = 160
PF = 224
vT = [V(248 + i) for i in range(8)]
ACC = 0
XB = 96
OACC = 0
LACC = 96
KF = 128
VF = 192


def acc(t, mt):
    return A(ACC + (t * 3 + mt) * 4, 4)


def tr(t):
    return V(TR + t * 4, 4)


def raw(buf, e):
    return V(RAW + buf * 32 + e * 4, 4)


def xf(ks, mt):
    return A(XB + ((ks % 3) * 3 + mt) * 4, 4)


def sreg(par, kt, qt):
    return V(SB[par] + (kt * 3 + qt) * 4, 4)


def qf(qt, s):
    return V(QF + (qt * 4 + s) * 4, 4)


def pf(ks, qt):
    return V(PF + (ks * 3 + qt) * 4, 4)


def negm(qt):
    return V(NEGM + qt * 4, 4)


def oacc(dt, qt):
    return A(OACC + (dt * 3 + qt) * 4, 4)


def lacc(qt):
    return A(LACC + qt * 4, 4)


def kf(kt, s):
    return A(KF + (kt * 4 + s) * 4, 4)


def vf(dt, ks):
    return A(VF + (dt * 2 + ks) * 4, 4)


def perms(buf, t):
    o = []
    for p in range(4):
        lo = V(RAW + buf * 32 + (2 * p) * 4 + t // 2)
        hi = V(RAW + buf * 32 + (2 * p + 1) * 4 + t // 2)
        o.append(valu('v_perm_b32', V(TR + t * 4 + p), hi, lo, sSELHI if t & 1 else sSELLO))
    return o


def dma_group(kind, c):
    slot = (c % 5) * 32768 + (16384 if kind == 'V' else 0)
    o = [salu('s_add_u32', 'm0', sLDSW, slot),
         salu('s_add_u32', sT0, sKV, c * 16384)]
    for i in range(4):
        voff = vOFFK[i] if kind == 'K' else vOFFV[i & 1]
        o.append(dma(voff, SRD_K if kind == 'K' else SRD_V, sT0, i * 1024, tag=f'{kind}{c}', flags=KVFLAGS))
    return o


def gemm_phase(L, is_q, bfrag, extra=None):
    def wloads(ks):
        o = []
        buf = (ks + (0 if is_q else 3)) % NB
        o.append(salu('s_add_u32', sKK, sB, ks))
        o.append(salu('s_and_b32', sKK, sKK, 15))
        o.append(salu('s_lshl_b32', sKK, sKK, 18 if is_q else 15))
        o.append(salu('s_add_u32', sWOFF, sWBASE, sKK))
        if is_q:
            for e in range(8):
                if e:
                    o.append(salu('s_add_u32', sWOFF, sWOFF, 8192))
                o.append(buf_load(raw(buf, e), vOFFWQ0, SRD_WQ, sWOFF, flags=WFLAGS))
        else:
            for e in range(8):
                o.append(buf_load(raw(buf, e), vOFFWO[e >> 2], SRD_WO, sWOFF, (e & 3) * 1024, flags=WFLAGS))
        return o

    def xloads(ks):
        return []

    return wloads, xloads


STAMP = int(os.environ.get('STAMP', '0'))
STREGS = [3, 4, 5, 6, 7, 8, 9, 10, 11, 12, 13, 14, 15, 42, 43, 68]


def build_main():
    L = []
    e = L.append
    ex = L.extend
    slow_paths = []
    nst = [0]

    def stamp():
        if not STAMP:
            return
        e(wait_all(vm=False, lgkm=True))
        e(Ins('s_memtime s[90:91]', 'smem', [], ['s90', 's91']))
        e(Ins('s_waitcnt lgkmcnt(0)', 'other'))
        e(salu('s_mov_b32', S(STREGS[nst[0]]), S(90)))
        nst[0] += 1

    e(Ins('s_cmp_ge_u32 s2, 256', 'salu', ['s2'], ['scc']))
    e(Ins('s_cbranch_scc1 L_exit', 'branch', ['scc']))
    e(Ins('s_load_dwordx16 s[16:31], s[0:1], 0', 'smem', [], regs(S(16, 16))))
    e(Ins('s_load_dwordx8 s[32:39], s[0:1], 64', 'smem', [], regs(S(32, 8))))
    e(Ins('s_load_dwordx2 s[40:41], s[0:1], 96', 'smem', [], regs(S(40, 2))))
    e(salu('s_and_b32', sH, S(2), 7))
    e(salu('s_lshr_b32', sT0, S(2), 3))
    e(salu('s_and_b32', sB, sT0, 15))
    e(salu('s_lshr_b32', sBLK, sT0, 4))
    e(valu('v_lshrrev_b32', vT[0], 6, V(0)))
    e(valu('v_readfirstlane_b32', sW, vT[0]))
    e(valu('v_and_b32', vJ, 15, V(0)))
    e(valu('v_bfe_u32', vG, V(0), 4, 2))
    e(salu('s_mov_b32', sSELLO, 0x05040100))
    e(salu('s_mov_b32', sSELHI, 0x07060302))
    e(salu('s_mov_b32', sC, CSCALE))
    e(salu('s_mov_b32', sTH, THRESH))
    e(valu('v_lshlrev_b32', vT[0], 4, vJ))
    e(valu('v_lshl_add_u32', vOFFWQ0, vG, 16, vT[0]))
    e(valu('v_add_u32', vBF, 4, vJ))
    e(valu('v_and_b32', vBF, 15, vBF))
    e(valu('v_lshlrev_b32', vBB, 10, vJ))
    e(valu('v_lshl_add_u32', vOFFWO[0], vG, 13, vT[0]))
    e(valu('v_add_u32', vOFFWO[1], 4096, vOFFWO[0]))
    for i in range(4):
        e(valu('v_add_u32', vT[1], 4 * i + 4, vG))
        e(valu('v_and_b32', vT[1], 15, vT[1]))
        e(valu('v_xor_b32', vT[1], vT[1], vJ))
        e(valu('v_lshlrev_b32', vT[1], 4, vT[1]))
        e(valu('v_lshl_add_u32', vOFFK[i], vG, 8, vT[1]))
    for i in range(2):
        e(valu('v_add_u32', vT[1], 4 * i, vG))
        e(valu('v_lshlrev_b32', vT[1], 1, vT[1]))
        e(valu('v_xor_b32', vT[1], vT[1], vJ))
        e(valu('v_lshlrev_b32', vT[1], 4, vT[1]))
        e(valu('v_lshl_add_u32', vOFFV[i], vG, 8, vT[1]))
    e(valu('v_add_u32', vT[2], 4, vJ))
    e(valu('v_and_b32', vT[2], 15, vT[2]))
    for s in range(4):
        e(valu('v_lshl_add_u32', vT[1], vG, 2, s))
        e(valu('v_xor_b32', vT[1], vT[1], vT[2]))
        e(valu('v_lshlrev_b32', vT[1], 4, vT[1]))
        e(valu('v_lshl_add_u32', vKB[s], vJ, 8, vT[1]))
    e(valu('v_lshrrev_b32', vT[3], 2, vJ))
    e(valu('v_lshl_add_u32', vT[4], vG, 2, vT[3]))
    e(valu('v_and_b32', vT[5], 7, vT[4]))
    e(valu('v_and_b32', vT[6], 3, vJ))
    e(valu('v_lshlrev_b32', vT[6], 3, vT[6]))
    e(valu('v_lshl_add_u32', vT[6], vT[4], 8, vT[6]))
    for dt in range(8):
        e(valu('v_xor_b32', vT[1], dt, vT[5]))
        e(valu('v_lshl_add_u32', vVB[dt], vT[1], 5, vT[6]))
    e(Ins('s_waitcnt lgkmcnt(0)', 'other'))
    e(Ins(f's_cmp_eq_u32 {fmt(sBLK)}, 0', 'salu', regs(sBLK), ['scc']))
    for srd, pa, size in ((SRD_X, 16, 786432), (SRD_K, 18, 16777216), (SRD_V, 20, 16777216),
                          (SRD_WQ, 22, 4194304), (SRD_WO, 24, 4194304)):
        e(Ins(f's_cselect_b64 s[{srd[1]}:{srd[1] + 1}], s[{pa}:{pa + 1}], s[{pa + 10}:{pa + 11}]', 'salu',
              ['scc'] + regs(S(pa, 2)) + regs(S(pa + 10, 2)), regs(S(srd[1], 2))))
        e(salu('s_mov_b32', S(srd[1] + 2), size))
        e(salu('s_mov_b32', S(srd[1] + 3), 0x20000))
    e(salu('s_mov_b64', S(SRD_WS[1], 2), S(40, 2)))
    e(salu('s_mov_b32', S(SRD_WS[1] + 2), 32 * 8 * 48 * 2048))
    e(salu('s_mov_b32', S(SRD_WS[1] + 3), 0x20000))
    e(salu('s_mul_i32', sX[0], sB, 49152))
    e(salu('s_add_u32', sX[1], sX[0], 16384))
    e(salu('s_add_u32', sX[2], sX[0], 32768))
    e(salu('s_lshl_b32', sT0, sH, 2))
    e(salu('s_add_u32', sT0, sT0, sW))
    e(salu('s_lshl_b32', sWBASE, sT0, 8))
    e(salu('s_lshl_b32', sLDSW, sW, 12))
    e(salu('s_lshl_b32', sT0, sB, 3))
    e(salu('s_add_u32', sT0, sT0, sH))
    e(salu('s_lshl_b32', sKV, sT0, 17))
    e(salu('s_add_u32', sKV, sKV, sLDSW))
    e(salu('s_lshl_b32', sT1, sBLK, 7))
    e(salu('s_add_u32', sT0, sT0, sT1))
    e(salu('s_mul_i32', sOUT, sT0, 48 * 2048))
    e(salu('s_mul_i32', sT1, sW, 24576))
    e(salu('s_add_u32', sOUT, sOUT, sT1))

    def bfrag_reads(region, ks):
        o = []
        o.append(salu('s_add_u32', sKK, sB, ks))
        o.append(salu('s_and_b32', sT2, sKK, 3))
        o.append(salu('s_lshl_b32', sT2, sT2, 2))
        o.append(salu('s_bfe_u32', sKK, sKK, 0x20002))
        o.append(salu('s_lshl_b32', sKK, sKK, 8))
        o.append(salu('s_add_u32', sKK, sKK, region))
        ad = vBA[ks & 1]
        o.append(valu('v_add_u32', ad, sT2, vG))
        o.append(valu('v_xor_b32', ad, ad, vBF))
        o.append(valu('v_lshl_add_u32', ad, ad, 4, vBB))
        o.append(valu('v_add_u32', ad, sKK, ad))
        for mt in range(3):
            o.append(ds_read('ds_read_b128', xf(ks, mt), ad, mt * 16384))
        return o

    def gemm(is_q, region, extra, pre_issued=0):
        wloads, _ = gemm_phase(L, is_q, None)
        for ks in range(pre_issued, NB):
            ex(wloads(ks))
        ex(bfrag_reads(region, 0))
        ex(bfrag_reads(region, 1))
        boff = 0 if is_q else 3
        for t in range(8):
            ex(perms(boff, t))
        ex(wloads(NB))
        for ks in range(16):
            if ks + 2 < 16:
                ex(bfrag_reads(region, ks + 2))
            for t in range(8):
                for mt in range(3):
                    e(mfma(acc(t, mt), tr(t), xf(ks, mt), acc(t, mt) if ks else 0))
                if ks + 1 < 16:
                    ex(perms((ks + 1 + boff) % NB, t))
            if ks + 1 + NB < 16:
                ex(wloads(ks + 1 + NB))
            if extra and ks in extra:
                ex(extra[ks])

    L.append(Ins('; ======== phase 1: Q projection', 'comment'))
    stamp()
    XREG = 112 * 1024
    XT = [V(32), V(33), V(34)]
    e(valu('v_and_b32', XT[0], 63, V(0)))
    e(salu('s_mul_i32', sT1, sW, 12))
    for i in range(12):
        e(salu('s_add_u32', sT0, sT1, i))
        e(salu('s_add_u32', sT2, sT0, 4))
        e(salu('s_and_b32', sT2, sT2, 15))
        e(valu('v_xor_b32', XT[1 + (i & 1)], sT2, XT[0]))
        e(valu('v_lshlrev_b32', XT[1 + (i & 1)], 4, XT[1 + (i & 1)]))
        e(salu('s_lshl_b32', sT0, sT0, 10))
        e(salu('s_add_u32', 'm0', sT0, XREG))
        e(salu('s_add_u32', sT0, sT0, sX[0]))
        e(dma(XT[1 + (i & 1)], SRD_X, sT0, 0, tag='X'))
    wl1, _ = gemm_phase(L, True, None)
    for ks in range(5):
        ex(wl1(ks))
    e(wait_vm_tag('X'))
    e(barrier())
    extra = {}
    groups = [('K', 0), ('V', 0), ('K', 1), ('V', 1), ('K', 2), ('V', 2), ('K', 3)]
    for g, (kind, c) in enumerate(groups):
        extra[2 * g] = dma_group(kind, c)
    gemm(True, XREG, extra, pre_issued=5)

    stamp()
    L.append(Ins('; ======== Q fragments', 'comment'))
    n = 0
    for qt in range(3):
        for s in range(4):
            for p in range(4):
                a0 = V(208 + (n % 8) * 2)
                a1 = V(209 + (n % 8) * 2)
                n += 1
                e(valu('v_accvgpr_read_b32', a0, A(acc(2 * p, qt)[1] + s)))
                e(valu('v_accvgpr_read_b32', a1, A(acc(2 * p + 1, qt)[1] + s)))
                e(valu('v_mul_f32', a0, sC, a0))
                e(valu('v_mul_f32', a1, sC, a1))
                e(valu('v_cvt_pk_bf16_f32', V(qf(qt, s)[1] + p), a0, a1))
    for r in range(4):
        e(valu('v_mov_b32', V(ONES[1] + r), 0x3f803f80))
    for i in range(108):
        e(valu('v_accvgpr_write_b32', A(OACC + i), 0))

    def kaddr(c):
        return [valu('v_add_u32', vKA[s], (c % 5) * 32768, vKB[s]) for s in range(4)]

    def vaddr(c):
        return [valu('v_add_u32', vVA[d], (c % 5) * 32768 + 16384, vVB[d]) for d in range(8)]

    def kreads():
        return [ds_read('ds_read_b128', kf(kt, s), vKA[s], kt * 4096) for kt in range(4) for s in range(4)]

    def vreads():
        o = []
        for ks in range(2):
            for dt in range(8):
                for hf in range(2):
                    o.append(ds_read('ds_read_b64_tr_b16', A(vf(dt, ks)[1] + 2 * hf, 2), vVA[dt], ks * 8192 + hf * 4096))
        return o

    def qk_mfmas(par, first):
        o = []
        for kt in range(4):
            for s in range(4):
                for qt in range(3):
                    C = sreg(par, kt, qt) if s else (0 if first else negm(qt))
                    o.append(mfma(sreg(par, kt, qt), kf(kt, s), qf(qt, s), C))
        return o

    def exp_ops(par):
        o = []
        for kt in range(4):
            for qt in range(3):
                b = sreg(par, kt, qt)[1]
                for r in range(4):
                    o.append(valu('v_exp_f32', V(b + r), V(b + r)))
                pb = pf(kt // 2, qt)[1] + (kt & 1) * 2
                o.append(valu('v_cvt_pk_bf16_f32', V(pb), V(b), V(b + 1)))
                o.append(valu('v_cvt_pk_bf16_f32', V(pb + 1), V(b + 2), V(b + 3)))
        return o

    def pv_mfmas():
        o = []
        for ks in range(2):
            for dt in range(8):
                for qt in range(3):
                    o.append(mfma(oacc(dt, qt), vf(dt, ks), pf(ks, qt), oacc(dt, qt)))
            for qt in range(3):
                o.append(mfma(lacc(qt), ONES, pf(ks, qt), lacc(qt)))
        return o

    def max_all(par):
        o = []
        b = SB[par]
        o.append(valu('v_max3_f32', vTMP[0], V(b), V(b + 1), V(b + 2)))
        for i in range(3, 47, 2):
            o.append(valu('v_max3_f32', vTMP[0], vTMP[0], V(b + i), V(b + i + 1)))
        o.append(valu('v_max_f32', vTMP[0], vTMP[0], V(b + 47)))
        return o

    def rebase(par, first):
        o = []
        o.append(valu('v_and_b32', vT[6], 63, V(0)))
        o.append(valu('v_xor_b32', vT[4], 16, vT[6]))
        o.append(valu('v_lshlrev_b32', vT[4], 2, vT[4]))
        o.append(valu('v_xor_b32', vT[5], 32, vT[6]))
        o.append(valu('v_lshlrev_b32', vT[5], 2, vT[5]))
        for qt in range(3):
            m = vT[qt]
            vals = [V(sreg(par, kt, qt)[1] + r) for kt in range(4) for r in range(4)]
            o.append(valu('v_max3_f32', m, vals[0], vals[1], vals[2]))
            for i in range(3, 15, 2):
                o.append(valu('v_max3_f32', m, m, vals[i], vals[i + 1]))
            o.append(valu('v_max_f32', m, m, vals[15]))
            o.append(ds_bperm(vT[7], vT[4], m))
            o.append(valu('v_max_f32', m, m, vT[7]))
            o.append(ds_bperm(vT[7], vT[5], m))
            o.append(valu('v_max_f32', m, m, vT[7]))
            if not first:
                o.append(valu('v_max_f32', m, 0, m))
            for v in vals:
                o.append(valu('v_sub_f32', v, v, m))
            if first:
                for r in range(4):
                    o.append(valu('v_sub_f32', V(negm(qt)[1] + r), 0, m))
            else:
                for r in range(4):
                    o.append(valu('v_sub_f32', V(negm(qt)[1] + r), V(negm(qt)[1] + r), m))
                o.append(valu('v_sub_f32', vT[7], 0, m))
                o.append(valu('v_exp_f32', vT[7], vT[7]))
                accs = [A(oacc(dt, qt)[1] + r) for dt in range(8) for r in range(4)] + [A(lacc(qt)[1] + r) for r in range(4)]
                for a_ in accs:
                    o.append(valu('v_accvgpr_read_b32', vT[6], a_))
                    o.append(valu('v_mul_f32', vT[6], vT[6], vT[7]))
                    o.append(valu('v_accvgpr_write_b32', a_, vT[6]))
        return o

    L.append(Ins('; ======== attention prologue', 'comment'))
    ex(kaddr(0))
    e(wait_vm_tag('K0'))
    e(wait_all(vm=False, lgkm=True))
    e(barrier())
    ex(dma_group('V', 3))
    ex(dma_group('K', 4))
    ex(dma_group('V', 4))
    ex(interleave(kreads(), []))
    ex(qk_mfmas(0, True))
    ex(rebase(0, True))

    wl4 = None
    for c in range(8):
        par = c & 1
        stamp()
        L.append(Ins(f'; ======== attention chunk {c}', 'comment'))
        if c < 7:
            ex(kaddr(c + 1))
            e(wait_vm_tag(f'K{c + 1}'))
        ex(vaddr(c))
        e(wait_vm_tag(f'V{c}'))
        e(wait_all(vm=False, lgkm=True))
        e(barrier())
        if 1 <= c <= 3:
            ex(dma_group('K', c + 4))
            ex(dma_group('V', c + 4))
        if c < 7:
            kr = kreads()
            ex(kr[:8])
            fill = kr[8:] + interleave(exp_ops(par), vreads())
            ex(interleave(qk_mfmas(par ^ 1, False), fill))
        else:
            ex(interleave(exp_ops(par), vreads()))
        if c == 6:
            e(salu('s_lshl_b32', sT0, sH, 19))
            e(salu('s_lshl_b32', sT1, sW, 8))
            e(salu('s_add_u32', sWBASE, sT0, sT1))
            wl4, _ = gemm_phase(L, False, None)
            ex(wl4(0))
            ex(wl4(1))
        if c < 7:
            ex(interleave(pv_mfmas(), max_all(par ^ 1), start=12))
            e(Ins(f"v_cmp_lt_f32 vcc, {fmt(sTH)}, {fmt(vTMP[0])}", 'valu', regs(vTMP[0]) + regs(sTH), ['vcc'], {'op': 'v_cmp'}))
            e(nop(3))
            e(Ins(f's_cbranch_vccnz L_slow{c}', 'branch', ['vcc']))
            e(Ins(f'L_back{c}:', 'label'))
            sp = rebase(par ^ 1, False)
            sp.append(nop(7))
            sp.append(nop(7))
            sp.append(Ins(f's_branch L_back{c}', 'branch'))
            slow_paths.append((f'L_slow{c}', sp))
        else:
            ex(pv_mfmas())

    stamp()
    L.append(Ins('; ======== O normalise -> LDS', 'comment'))
    ex(wl4(2))
    ex(wl4(3))
    ex(wl4(4))
    nT = [V(32 + i) for i in range(8)]
    e(valu('v_lshrrev_b32', nT[3], 1, vG))
    e(valu('v_and_b32', nT[4], 1, vG))
    e(valu('v_lshlrev_b32', nT[4], 3, nT[4]))
    e(valu('v_add_u32', nT[4], nT[4], vBB))
    e(salu('s_lshl_b32', sT0, sW, 8))
    e(valu('v_add_u32', nT[4], sT0, nT[4]))
    OW = [V(48 + d) for d in range(8)]
    for dt in range(8):
        e(valu('v_add_u32', nT[5], 2 * dt, nT[3]))
        e(valu('v_xor_b32', nT[5], nT[5], vBF))
        e(valu('v_lshl_add_u32', OW[dt], nT[5], 4, nT[4]))
    for qt in range(3):
        e(valu('v_accvgpr_read_b32', nT[6], A(lacc(qt)[1])))
        e(valu('v_rcp_f32', nT[6], nT[6]))
        for dt in range(8):
            b = 128 + ((qt * 8 + dt) % 5) * 6
            for r in range(4):
                e(valu('v_accvgpr_read_b32', V(b + r), A(oacc(dt, qt)[1] + r)))
                e(valu('v_mul_f32', V(b + r), V(b + r), nT[6]))
            e(valu('v_cvt_pk_bf16_f32', V(b + 4), V(b), V(b + 1)))
            e(valu('v_cvt_pk_bf16_f32', V(b + 5), V(b + 2), V(b + 3)))
            e(ds_write('ds_write_b64', OW[dt], V(b + 4, 2), qt * 16384))
    e(wait_all(vm=False, lgkm=True))
    e(barrier())
    stamp()
    L.append(Ins('; ======== phase 4: output projection', 'comment'))
    gemm(False, 0, None, pre_issued=5)

    stamp()
    L.append(Ins('; ======== store partials', 'comment'))
    e(valu('v_and_b32', vBA[0], 63, V(0)))
    e(valu('v_lshlrev_b32', vBA[0], 4, vBA[0]))
    for t in range(8):
        for mt in range(3):
            i = t * 3 + mt
            if i and i % 4 == 0:
                e(salu('s_add_u32', sOUT, sOUT, 4096))
            e(buf_store(acc(t, mt), vBA[0], SRD_WS, sOUT, (i % 4) * 1024))
    if STAMP:
        e(wait_all())
        stamp()
        e(salu('s_mov_b32', S(SRD_WS[1] + 2), 0x10000000))
        e(salu('s_lshl_b32', sT0, S(2), 2))
        e(salu('s_add_u32', sT0, sT0, sW))
        e(salu('s_lshl_b32', sT0, sT0, 7))
        e(salu('s_add_u32', sT0, sT0, 64 << 20))
        e(valu('v_mov_b32', V(1), 0))
        e(valu('v_mov_b32', V(3), 0))
        for i in range(nst[0]):
            e(valu('v_mov_b32', V(2), S(STREGS[i])))
            e(buf_store(V(2, 2), V(1), SRD_WS, sT0, i * 8))
            e(wait_all())
    e(Ins('L_exit:', 'label'))
    e(Ins('s_endpgm', 'other'))
    lines, stats = finalize(L)
    print('main', stats, len(lines), file=sys.stderr)
    for name, sp in slow_paths:
        lines.append(name + ':')
        l2, _ = finalize(sp, entry_pad=True)
        lines += l2
    return lines


def build_reduce():
    L = []
    e = L.append
    e(Ins('s_cmp_ge_u32 s2, 384', 'salu', ['s2'], ['scc']))
    e(Ins('s_cbranch_scc1 R_exit', 'branch', ['scc']))
    e(Ins('s_load_dwordx2 s[4:5], s[0:1], 80', 'smem', [], regs(S(4, 2))))
    e(Ins('s_load_dwordx2 s[6:7], s[0:1], 96', 'smem', [], regs(S(6, 2))))
    e(salu('s_mul_i32', S(20), S(2), 5462))
    e(salu('s_lshr_b32', S(20), S(20), 16))
    e(salu('s_mul_i32', S(21), S(20), 12))
    e(salu('s_sub_u32', S(21), S(2), S(21)))
    e(salu('s_mul_i32', S(26), S(21), 11))
    e(salu('s_lshr_b32', S(26), S(26), 5))
    e(salu('s_mul_i32', S(27), S(26), 3))
    e(salu('s_sub_u32', S(27), S(21), S(27)))
    e(valu('v_lshlrev_b32', V(3), 4, V(0)))
    e(salu('s_mul_i32', S(23), S(20), 8 * 98304))
    e(salu('s_mul_i32', S(28), S(26), 24576))
    e(salu('s_add_u32', S(23), S(23), S(28)))
    e(salu('s_lshl_b32', S(28), S(27), 10))
    e(salu('s_add_u32', S(23), S(23), S(28)))
    e(valu('v_and_b32', V(1), 15, V(0)))
    e(valu('v_lshrrev_b32', V(2), 4, V(0)))
    e(valu('v_lshlrev_b32', V(2), 6, V(2)))
    e(valu('v_lshl_add_u32', V(4), V(1), 11, V(2)))
    e(salu('s_and_b32', S(24), S(20), 15))
    e(salu('s_mul_i32', S(24), S(24), 48 * 2048))
    e(salu('s_lshr_b32', S(25), S(20), 4))
    e(salu('s_lshl_b32', S(25), S(25), 10))
    e(salu('s_add_u32', S(24), S(24), S(25)))
    e(salu('s_lshl_b32', S(25), S(27), 15))
    e(salu('s_add_u32', S(24), S(24), S(25)))
    e(salu('s_lshl_b32', S(25), S(26), 8))
    e(salu('s_add_u32', S(24), S(24), S(25)))
    e(Ins('s_waitcnt lgkmcnt(0)', 'other'))
    e(salu('s_mov_b64', S(8, 2), S(4, 2)))
    e(salu('s_mov_b32', S(10), 16 * 48 * 1024 * 2))
    e(salu('s_mov_b32', S(11), 0x20000))
    e(salu('s_mov_b64', S(12, 2), S(6, 2)))
    e(salu('s_mov_b32', S(14), 32 * 8 * 48 * 2048))
    e(salu('s_mov_b32', S(15), 0x20000))
    B0 = 8

    def ld(hh, slot):
        for t in range(8):
            e(salu('s_add_u32', S(29), S(23), hh * 98304 + t * 3072))
            e(buf_load(V(B0 + (slot * 8 + t) * 4, 4), V(3), S(12, 4), S(29)))

    def add(slot):
        for i in range(32):
            e(valu('v_add_f32', V(B0 + i), V(B0 + i), V(B0 + slot * 32 + i)))
    for hh in range(7):
        ld(hh, hh)
    add(1)
    ld(7, 1)
    for hh in range(2, 7):
        add(hh)
    add(1)
    for r in range(4):
        for p in range(4):
            e(valu('v_cvt_pk_bf16_f32', V(B0 + 64 + r * 4 + p), V(B0 + (2 * p) * 4 + r), V(B0 + (2 * p + 1) * 4 + r)))
        e(buf_store(V(B0 + 64 + r * 4, 4), V(4), S(8, 4), S(24), r * 16))
    e(Ins('R_exit:', 'label'))
    e(Ins('s_endpgm', 'other'))
    lines, stats = finalize(L)
    return lines


def kd(name, vgpr, accum, sgpr):
    return f""".amdhsa_kernel {name}
  .amdhsa_next_free_vgpr {vgpr}
  .amdhsa_next_free_sgpr {sgpr}
  .amdhsa_accum_offset {accum}
  .amdhsa_group_segment_fixed_size 0
  .amdhsa_kernarg_size 104
  .amdhsa_user_sgpr_count 2
  .amdhsa_user_sgpr_kernarg_segment_ptr 1
  .amdhsa_system_sgpr_workgroup_id_x 1
.end_amdhsa_kernel
"""


for wg in range(384 + 16):
    assert (wg * 5462) >> 16 == wg // 12
for rq in range(12):
    assert (rq * 11) >> 5 == rq // 3

main = build_main()
red = build_reduce()
txt = HDR
txt += f'; @launch kernel={NAME}_kernel grid=(256,1,1) block=(256,1,1) lds=163840\n'
txt += '; @launch kernel=reduce_kernel grid=(384,1,1) block=(64,1,1) lds=0\n'
txt += '.amdgcn_target "amdgcn-amd-amdhsa--gfx950"\n.text\n'
txt += f'.globl {NAME}_kernel\n.p2align 8\n.type {NAME}_kernel,@function\n{NAME}_kernel:\n'
txt += '\n'.join(main) + '\n'
txt += '.globl reduce_kernel\n.p2align 8\n.type reduce_kernel,@function\nreduce_kernel:\n'
txt += '\n'.join(red) + '\n'
txt += '.section .rodata,"a"\n.p2align 6\n'
txt += kd(f'{NAME}_kernel', 512, 256, 96)
txt += '.p2align 6\n'
txt += kd('reduce_kernel', 232, 232, 32)
open(OUT, 'w').write(txt)
print('wrote', OUT, len(txt), file=sys.stderr)
```

```python
import sys
import struct
from asmlib import *
import os
KVFLAGS = os.environ.get('KVFLAGS', 'nt')
WFLAGS = os.environ.get('WFLAGS', '')

NAME = 'concat_heads__gqa_block_cached__gqa_block_cached__near_ridge'
OUT = sys.argv[1] if len(sys.argv) > 1 else f'cdna_kernels/{NAME}.s'

HDR = open(f'cdna_kernels/{NAME}.s.ref').read().split('; Override launch')[0]


def f32bits(x):
    return struct.unpack('<I', struct.pack('<f', x))[0]


CSCALE = f32bits(1.4426950408889634 / (128.0 ** 0.5))
THRESH = f32bits(16.0)

sPTR = 16
SRD_X, SRD_K, SRD_V, SRD_WQ, SRD_WO, SRD_WS = S(44, 4), S(48, 4), S(52, 4), S(56, 4), S(60, 4), S(64, 4)
sH, sB, sBLK, sW = S(70), S(71), S(72), S(73)
sX = [S(74), S(75), S(76)]
sWOFF = S(77)
sKV = S(78)
sT0, sT1 = S(79), S(80)
sSELLO, sSELHI = S(82), S(83)
sLDSW = S(84)
sOUT = S(85)
sC = S(86)
sTH = S(87)
sWBASE = S(88)
sKK = S(89)
sT2 = S(92)

vJ, vG = V(1), V(2)
vOFFWQ0 = V(3)
vBF = V(4)
vBB = V(5)
vBA = [V(6), V(7)]
vOFFK = [V(12 + i) for i in range(4)]
vOFFV = [V(16 + i) for i in range(2)]
vKB = [V(18 + s) for s in range(4)]
vVB = [V(22 + d) for d in range(8)]
vOFFWO = [V(30), V(31)]
TR = 32
RAW = 64
NB = 6
NEGM = 32
ONES = V(44, 4)
vKA = [V(48 + s) for s in range(4)]
vVA = [V(52 + d) for d in range(8)]
vTMP = [V(60 + i) for i in range(4)]
SB = [64, 112]
QF = 160
PF = 224
vT = [V(248 + i) for i in range(8)]
ACC = 0
XB = 96
OACC = 0
LACC = 96
KF = 128
VF = 192


def acc(t, mt):
    return A(ACC + (t * 3 + mt) * 4, 4)


def tr(t):
    return V(TR + t * 4, 4)


def raw(buf, e):
    return V(RAW + buf * 32 + e * 4, 4)


def xf(ks, mt):
    return A(XB + ((ks % 3) * 3 + mt) * 4, 4)


def sreg(par, kt, qt):
    return V(SB[par] + (kt * 3 + qt) * 4, 4)


def qf(qt, s):
    return V(QF + (qt * 4 + s) * 4, 4)


def pf(ks, qt):
    return V(PF + (ks * 3 + qt) * 4, 4)


def negm(qt):
    return V(NEGM + qt * 4, 4)


def oacc(dt, qt):
    return A(OACC + (dt * 3 + qt) * 4, 4)


def lacc(qt):
    return A(LACC + qt * 4, 4)


def kf(kt, s):
    return A(KF + (kt * 4 + s) * 4, 4)


def vf(dt, ks):
    return A(VF + (dt * 2 + ks) * 4, 4)


def perms(buf, t):
    o = []
    for p in range(4):
        lo = V(RAW + buf * 32 + (2 * p) * 4 + t // 2)
        hi = V(RAW + buf * 32 + (2 * p + 1) * 4 + t // 2)
        o.append(valu('v_perm_b32', V(TR + t * 4 + p), hi, lo, sSELHI if t & 1 else sSELLO))
    return o


def dma_group(kind, c):
    slot = (c % 5) * 32768 + (16384 if kind == 'V' else 0)
    o = [salu('s_add_u32', 'm0', sLDSW, slot),
         salu('s_add_u32', sT0, sKV, c * 16384)]
    for i in range(4):
        voff = vOFFK[i] if kind == 'K' else vOFFV[i & 1]
        o.append(dma(voff, SRD_K if kind == 'K' else SRD_V, sT0, i * 1024, tag=f'{kind}{c}', flags=KVFLAGS))
    return o


def gemm_phase(L, is_q, bfrag, extra=None):
    def wloads(ks):
        o = []
        buf = (ks + (0 if is_q else 3)) % NB
        o.append(salu('s_add_u32', sKK, sB, ks))
        o.append(salu('s_and_b32', sKK, sKK, 15))
        o.append(salu('s_lshl_b32', sKK, sKK, 18 if is_q else 15))
        o.append(salu('s_add_u32', sWOFF, sWBASE, sKK))
        if is_q:
            for e in range(8):
                if e:
                    o.append(salu('s_add_u32', sWOFF, sWOFF, 8192))
                o.append(buf_load(raw(buf, e), vOFFWQ0, SRD_WQ, sWOFF, flags=WFLAGS))
        else:
            for e in range(8):
                o.append(buf_load(raw(buf, e), vOFFWO[e >> 2], SRD_WO, sWOFF, (e & 3) * 1024, flags=WFLAGS))
        return o

    def xloads(ks):
        return []

    return wloads, xloads


STAMP = int(os.environ.get('STAMP', '0'))
STREGS = [3, 4, 5, 6, 7, 8, 9, 10, 11, 12, 13, 14, 15, 42, 43, 68]


def build_main():
    L = []
    e = L.append
    ex = L.extend
    slow_paths = []
    nst = [0]

    def stamp():
        if not STAMP:
            return
        e(wait_all(vm=False, lgkm=True))
        e(Ins('s_memtime s[90:91]', 'smem', [], ['s90', 's91']))
        e(Ins('s_waitcnt lgkmcnt(0)', 'other'))
        e(salu('s_mov_b32', S(STREGS[nst[0]]), S(90)))
        nst[0] += 1

    e(Ins('s_cmp_ge_u32 s2, 256', 'salu', ['s2'], ['scc']))
    e(Ins('s_cbranch_scc1 L_exit', 'branch', ['scc']))
    e(Ins('s_load_dwordx16 s[16:31], s[0:1], 0', 'smem', [], regs(S(16, 16))))
    e(Ins('s_load_dwordx8 s[32:39], s[0:1], 64', 'smem', [], regs(S(32, 8))))
    e(Ins('s_load_dwordx2 s[40:41], s[0:1], 96', 'smem', [], regs(S(40, 2))))
    e(salu('s_and_b32', sH, S(2), 7))
    e(salu('s_lshr_b32', sT0, S(2), 3))
    e(salu('s_and_b32', sB, sT0, 15))
    e(salu('s_lshr_b32', sBLK, sT0, 4))
    e(valu('v_lshrrev_b32', vT[0], 6, V(0)))
    e(valu('v_readfirstlane_b32', sW, vT[0]))
    e(valu('v_and_b32', vJ, 15, V(0)))
    e(valu('v_bfe_u32', vG, V(0), 4, 2))
    e(salu('s_mov_b32', sSELLO, 0x05040100))
    e(salu('s_mov_b32', sSELHI, 0x07060302))
    e(salu('s_mov_b32', sC, CSCALE))
    e(salu('s_mov_b32', sTH, THRESH))
    e(valu('v_lshlrev_b32', vT[0], 4, vJ))
    e(valu('v_lshl_add_u32', vOFFWQ0, vG, 16, vT[0]))
    e(valu('v_add_u32', vBF, 4, vJ))
    e(valu('v_and_b32', vBF, 15, vBF))
    e(valu('v_lshlrev_b32', vBB, 10, vJ))
    e(valu('v_lshl_add_u32', vOFFWO[0], vG, 13, vT[0]))
    e(valu('v_add_u32', vOFFWO[1], 4096, vOFFWO[0]))
    for i in range(4):
        e(valu('v_add_u32', vT[1], 4 * i + 4, vG))
        e(valu('v_and_b32', vT[1], 15, vT[1]))
        e(valu('v_xor_b32', vT[1], vT[1], vJ))
        e(valu('v_lshlrev_b32', vT[1], 4, vT[1]))
        e(valu('v_lshl_add_u32', vOFFK[i], vG, 8, vT[1]))
    for i in range(2):
        e(valu('v_add_u32', vT[1], 4 * i, vG))
        e(valu('v_lshlrev_b32', vT[1], 1, vT[1]))
        e(valu('v_xor_b32', vT[1], vT[1], vJ))
        e(valu('v_lshlrev_b32', vT[1], 4, vT[1]))
        e(valu('v_lshl_add_u32', vOFFV[i], vG, 8, vT[1]))
    e(valu('v_add_u32', vT[2], 4, vJ))
    e(valu('v_and_b32', vT[2], 15, vT[2]))
    for s in range(4):
        e(valu('v_lshl_add_u32', vT[1], vG, 2, s))
        e(valu('v_xor_b32', vT[1], vT[1], vT[2]))
        e(valu('v_lshlrev_b32', vT[1], 4, vT[1]))
        e(valu('v_lshl_add_u32', vKB[s], vJ, 8, vT[1]))
    e(valu('v_lshrrev_b32', vT[3], 2, vJ))
    e(valu('v_lshl_add_u32', vT[4], vG, 2, vT[3]))
    e(valu('v_and_b32', vT[5], 7, vT[4]))
    e(valu('v_and_b32', vT[6], 3, vJ))
    e(valu('v_lshlrev_b32', vT[6], 3, vT[6]))
    e(valu('v_lshl_add_u32', vT[6], vT[4], 8, vT[6]))
    for dt in range(8):
        e(valu('v_xor_b32', vT[1], dt, vT[5]))
        e(valu('v_lshl_add_u32', vVB[dt], vT[1], 5, vT[6]))
    e(Ins('s_waitcnt lgkmcnt(0)', 'other'))
    e(Ins(f's_cmp_eq_u32 {fmt(sBLK)}, 0', 'salu', regs(sBLK), ['scc']))
    for srd, pa, size in ((SRD_X, 16, 786432), (SRD_K, 18, 16777216), (SRD_V, 20, 16777216),
                          (SRD_WQ, 22, 4194304), (SRD_WO, 24, 4194304)):
        e(Ins(f's_cselect_b64 s[{srd[1]}:{srd[1] + 1}], s[{pa}:{pa + 1}], s[{pa + 10}:{pa + 11}]', 'salu',
              ['scc'] + regs(S(pa, 2)) + regs(S(pa + 10, 2)), regs(S(srd[1], 2))))
        e(salu('s_mov_b32', S(srd[1] + 2), size))
        e(salu('s_mov_b32', S(srd[1] + 3), 0x20000))
    e(salu('s_mov_b64', S(SRD_WS[1], 2), S(40, 2)))
    e(salu('s_mov_b32', S(SRD_WS[1] + 2), 32 * 8 * 48 * 1024))
    e(salu('s_mov_b32', S(SRD_WS[1] + 3), 0x20000))
    e(salu('s_mul_i32', sX[0], sB, 49152))
    e(salu('s_add_u32', sX[1], sX[0], 16384))
    e(salu('s_add_u32', sX[2], sX[0], 32768))
    e(salu('s_lshl_b32', sT0, sH, 2))
    e(salu('s_add_u32', sT0, sT0, sW))
    e(salu('s_lshl_b32', sWBASE, sT0, 8))
    e(salu('s_lshl_b32', sLDSW, sW, 12))
    e(salu('s_lshl_b32', sT0, sB, 3))
    e(salu('s_add_u32', sT0, sT0, sH))
    e(salu('s_lshl_b32', sKV, sT0, 17))
    e(salu('s_add_u32', sKV, sKV, sLDSW))
    e(salu('s_lshl_b32', sT1, sBLK, 7))
    e(salu('s_add_u32', sT0, sT0, sT1))
    e(salu('s_mul_i32', sOUT, sT0, 48 * 1024))
    e(salu('s_mul_i32', sT1, sW, 12288))
    e(salu('s_add_u32', sOUT, sOUT, sT1))

    def bfrag_reads(region, ks):
        o = []
        o.append(salu('s_add_u32', sKK, sB, ks))
        o.append(salu('s_and_b32', sT2, sKK, 3))
        o.append(salu('s_lshl_b32', sT2, sT2, 2))
        o.append(salu('s_bfe_u32', sKK, sKK, 0x20002))
        o.append(salu('s_lshl_b32', sKK, sKK, 8))
        o.append(salu('s_add_u32', sKK, sKK, region))
        ad = vBA[ks & 1]
        o.append(valu('v_add_u32', ad, sT2, vG))
        o.append(valu('v_xor_b32', ad, ad, vBF))
        o.append(valu('v_lshl_add_u32', ad, ad, 4, vBB))
        o.append(valu('v_add_u32', ad, sKK, ad))
        for mt in range(3):
            o.append(ds_read('ds_read_b128', xf(ks, mt), ad, mt * 16384))
        return o

    def gemm(is_q, region, extra, pre_issued=0, ramp=False):
        wloads, _ = gemm_phase(L, is_q, None)
        nxt = pre_issued
        if not ramp:
            while nxt < NB:
                ex(wloads(nxt))
                nxt += 1
        ex(bfrag_reads(region, 0))
        ex(bfrag_reads(region, 1))
        boff = 0 if is_q else 3
        for t in range(8):
            ex(perms(boff, t))
        ex(wloads(nxt))
        nxt += 1
        for ks in range(16):
            if STAMP == 2 and ks % 4 == 0:
                stamp()
            if ks + 2 < 16:
                ex(bfrag_reads(region, ks + 2))
            for t in range(8):
                for mt in range(3):
                    e(mfma(acc(t, mt), tr(t), xf(ks, mt), acc(t, mt) if ks else 0))
                if ks + 1 < 16:
                    ex(perms((ks + 1 + boff) % NB, t))
                if t == 3 and nxt < 16 and nxt < ks + NB:
                    ex(wloads(nxt))
                    nxt += 1
            if nxt < 16 and nxt <= ks + 1 + NB:
                ex(wloads(nxt))
                nxt += 1
            if extra and ks in extra:
                ex(extra[ks])

    L.append(Ins('; ======== phase 1: Q projection', 'comment'))
    stamp()
    XREG = 112 * 1024
    XT = [V(32), V(33), V(34)]
    e(valu('v_and_b32', XT[0], 63, V(0)))
    e(salu('s_mul_i32', sT1, sW, 12))
    for i in range(12):
        e(salu('s_add_u32', sT0, sT1, i))
        e(salu('s_add_u32', sT2, sT0, 4))
        e(salu('s_and_b32', sT2, sT2, 15))
        e(valu('v_xor_b32', XT[1 + (i & 1)], sT2, XT[0]))
        e(valu('v_lshlrev_b32', XT[1 + (i & 1)], 4, XT[1 + (i & 1)]))
        e(salu('s_lshl_b32', sT0, sT0, 10))
        e(salu('s_add_u32', 'm0', sT0, XREG))
        e(salu('s_add_u32', sT0, sT0, sX[0]))
        e(dma(XT[1 + (i & 1)], SRD_X, sT0, 0, tag='X'))
    wl1, _ = gemm_phase(L, True, None)
    for ks in range(2):
        ex(wl1(ks))
    e(wait_vm_tag('X'))
    e(barrier())
    if STAMP == 2:
        stamp()
    extra = {}
    groups = [('K', 0), ('V', 0), ('K', 1), ('V', 1), ('K', 2), ('V', 2), ('K', 3)]
    P1DMA = os.environ.get('P1DMA', 'spread')
    for g, (kind, c) in enumerate(groups):
        st = {'spread': 2 * g, 'late': 9, 'early': 0, 'late2': 9 + g // 2, 'end': 15}[P1DMA]
        extra.setdefault(st, []).extend(dma_group(kind, c))
    gemm(True, XREG, extra, pre_issued=2, ramp=True)

    stamp()
    L.append(Ins('; ======== Q fragments', 'comment'))
    n = 0
    for qt in range(3):
        for s in range(4):
            for p in range(4):
                a0 = V(208 + (n % 8) * 2)
                a1 = V(209 + (n % 8) * 2)
                n += 1
                e(valu('v_accvgpr_read_b32', a0, A(acc(2 * p, qt)[1] + s)))
                e(valu('v_accvgpr_read_b32', a1, A(acc(2 * p + 1, qt)[1] + s)))
                e(valu('v_mul_f32', a0, sC, a0))
                e(valu('v_mul_f32', a1, sC, a1))
                e(valu('v_cvt_pk_bf16_f32', V(qf(qt, s)[1] + p), a0, a1))
    for r in range(4):
        e(valu('v_mov_b32', V(ONES[1] + r), 0x3f803f80))
    for i in range(108):
        e(valu('v_accvgpr_write_b32', A(OACC + i), 0))

    def kaddr(c):
        return [valu('v_add_u32', vKA[s], (c % 5) * 32768, vKB[s]) for s in range(4)]

    def vaddr(c):
        return [valu('v_add_u32', vVA[d], (c % 5) * 32768 + 16384, vVB[d]) for d in range(8)]

    def kreads():
        return [ds_read('ds_read_b128', kf(kt, s), vKA[s], kt * 4096) for kt in range(4) for s in range(4)]

    def vreads():
        o = []
        for ks in range(2):
            for dt in range(8):
                for hf in range(2):
                    o.append(ds_read('ds_read_b64_tr_b16', A(vf(dt, ks)[1] + 2 * hf, 2), vVA[dt], ks * 8192 + hf * 4096))
        return o

    def qk_mfmas(par, first):
        o = []
        for kt in range(4):
            for s in range(4):
                for qt in range(3):
                    C = sreg(par, kt, qt) if s else (0 if first else negm(qt))
                    o.append(mfma(sreg(par, kt, qt), kf(kt, s), qf(qt, s), C))
        return o

    def exp_ops(par):
        o = []
        for kt in range(4):
            for qt in range(3):
                b = sreg(par, kt, qt)[1]
                for r in range(4):
                    o.append(valu('v_exp_f32', V(b + r), V(b + r)))
                pb = pf(kt // 2, qt)[1] + (kt & 1) * 2
                o.append(valu('v_cvt_pk_bf16_f32', V(pb), V(b), V(b + 1)))
                o.append(valu('v_cvt_pk_bf16_f32', V(pb + 1), V(b + 2), V(b + 3)))
        return o

    def pv_mfmas():
        o = []
        for ks in range(2):
            for dt in range(8):
                for qt in range(3):
                    o.append(mfma(oacc(dt, qt), vf(dt, ks), pf(ks, qt), oacc(dt, qt)))
            for qt in range(3):
                o.append(mfma(lacc(qt), ONES, pf(ks, qt), lacc(qt)))
        return o

    def max_all(par):
        o = []
        b = SB[par]
        o.append(valu('v_max3_f32', vTMP[0], V(b), V(b + 1), V(b + 2)))
        for i in range(3, 47, 2):
            o.append(valu('v_max3_f32', vTMP[0], vTMP[0], V(b + i), V(b + i + 1)))
        o.append(valu('v_max_f32', vTMP[0], vTMP[0], V(b + 47)))
        return o

    def rebase(par, first):
        o = []
        o.append(valu('v_and_b32', vT[6], 63, V(0)))
        o.append(valu('v_xor_b32', vT[4], 16, vT[6]))
        o.append(valu('v_lshlrev_b32', vT[4], 2, vT[4]))
        o.append(valu('v_xor_b32', vT[5], 32, vT[6]))
        o.append(valu('v_lshlrev_b32', vT[5], 2, vT[5]))
        for qt in range(3):
            m = vT[qt]
            vals = [V(sreg(par, kt, qt)[1] + r) for kt in range(4) for r in range(4)]
            o.append(valu('v_max3_f32', m, vals[0], vals[1], vals[2]))
            for i in range(3, 15, 2):
                o.append(valu('v_max3_f32', m, m, vals[i], vals[i + 1]))
            o.append(valu('v_max_f32', m, m, vals[15]))
            o.append(ds_bperm(vT[7], vT[4], m))
            o.append(valu('v_max_f32', m, m, vT[7]))
            o.append(ds_bperm(vT[7], vT[5], m))
            o.append(valu('v_max_f32', m, m, vT[7]))
            if not first:
                o.append(valu('v_max_f32', m, 0, m))
            for v in vals:
                o.append(valu('v_sub_f32', v, v, m))
            if first:
                for r in range(4):
                    o.append(valu('v_sub_f32', V(negm(qt)[1] + r), 0, m))
            else:
                for r in range(4):
                    o.append(valu('v_sub_f32', V(negm(qt)[1] + r), V(negm(qt)[1] + r), m))
                o.append(valu('v_sub_f32', vT[7], 0, m))
                o.append(valu('v_exp_f32', vT[7], vT[7]))
                accs = [A(oacc(dt, qt)[1] + r) for dt in range(8) for r in range(4)] + [A(lacc(qt)[1] + r) for r in range(4)]
                for a_ in accs:
                    o.append(valu('v_accvgpr_read_b32', vT[6], a_))
                    o.append(valu('v_mul_f32', vT[6], vT[6], vT[7]))
                    o.append(valu('v_accvgpr_write_b32', a_, vT[6]))
        return o

    L.append(Ins('; ======== attention prologue', 'comment'))
    ex(kaddr(0))
    e(wait_vm_tag('K0'))
    e(wait_all(vm=False, lgkm=True))
    e(barrier())
    ex(dma_group('V', 3))
    ex(dma_group('K', 4))
    ex(dma_group('V', 4))
    ex(interleave(kreads(), []))
    ex(qk_mfmas(0, True))
    ex(rebase(0, True))

    wl4 = None
    for c in range(8):
        par = c & 1
        if STAMP == 1 or c == 0:
            stamp()
        L.append(Ins(f'; ======== attention chunk {c}', 'comment'))
        if c < 7:
            ex(kaddr(c + 1))
            e(wait_vm_tag(f'K{c + 1}'))
        ex(vaddr(c))
        e(wait_vm_tag(f'V{c}'))
        e(wait_all(vm=False, lgkm=True))
        e(barrier())
        if 1 <= c <= 3:
            ex(dma_group('K', c + 4))
            ex(dma_group('V', c + 4))
        pv = pv_mfmas()
        eo = exp_ops(par)
        vr = vreads()
        if c < 7:
            kr = kreads()
            qk = qk_mfmas(par ^ 1, False)
            mx = max_all(par ^ 1)
            ex(kr[:6])
            ex(interleave(qk[:24], kr[6:] + interleave(eo[:36], vr[:16])))
            ex(interleave(pv[:27], interleave(eo[36:], vr[16:])))
            ex(interleave(qk[24:], mx[:11], start=4))
        else:
            ex(interleave(eo[:36], vr[:16]))
            ex(interleave(pv[:27], interleave(eo[36:], vr[16:])))
        if c == 6:
            e(salu('s_lshl_b32', sT0, sH, 19))
            e(salu('s_lshl_b32', sT1, sW, 8))
            e(salu('s_add_u32', sWBASE, sT0, sT1))
            wl4, _ = gemm_phase(L, False, None)
            ex(wl4(0))
            ex(wl4(1))
        if c < 7:
            ex(interleave(pv[27:], mx[11:], start=6))
            e(Ins(f"v_cmp_lt_f32 vcc, {fmt(sTH)}, {fmt(vTMP[0])}", 'valu', regs(vTMP[0]) + regs(sTH), ['vcc'], {'op': 'v_cmp'}))
            e(nop(3))
            e(Ins(f's_cbranch_vccnz L_slow{c}', 'branch', ['vcc']))
            e(Ins(f'L_back{c}:', 'label'))
            sp = rebase(par ^ 1, False)
            sp.append(nop(7))
            sp.append(nop(7))
            sp.append(Ins(f's_branch L_back{c}', 'branch'))
            slow_paths.append((f'L_slow{c}', sp))
        else:
            ex(pv[27:])

    stamp()
    L.append(Ins('; ======== O normalise -> LDS', 'comment'))
    ex(wl4(2))
    ex(wl4(3))
    ex(wl4(4))
    nT = [V(32 + i) for i in range(8)]
    e(valu('v_lshrrev_b32', nT[3], 1, vG))
    e(valu('v_and_b32', nT[4], 1, vG))
    e(valu('v_lshlrev_b32', nT[4], 3, nT[4]))
    e(valu('v_add_u32', nT[4], nT[4], vBB))
    e(salu('s_lshl_b32', sT0, sW, 8))
    e(valu('v_add_u32', nT[4], sT0, nT[4]))
    OW = [V(48 + d) for d in range(8)]
    for dt in range(8):
        e(valu('v_add_u32', nT[5], 2 * dt, nT[3]))
        e(valu('v_xor_b32', nT[5], nT[5], vBF))
        e(valu('v_lshl_add_u32', OW[dt], nT[5], 4, nT[4]))
    for qt in range(3):
        e(valu('v_accvgpr_read_b32', nT[6], A(lacc(qt)[1])))
        e(valu('v_rcp_f32', nT[6], nT[6]))
        for dt in range(8):
            b = 128 + ((qt * 8 + dt) % 5) * 6
            for r in range(4):
                e(valu('v_accvgpr_read_b32', V(b + r), A(oacc(dt, qt)[1] + r)))
                e(valu('v_mul_f32', V(b + r), V(b + r), nT[6]))
            e(valu('v_cvt_pk_bf16_f32', V(b + 4), V(b), V(b + 1)))
            e(valu('v_cvt_pk_bf16_f32', V(b + 5), V(b + 2), V(b + 3)))
            e(ds_write('ds_write_b64', OW[dt], V(b + 4, 2), qt * 16384))
    e(wait_all(vm=False, lgkm=True))
    e(barrier())
    stamp()
    L.append(Ins('; ======== phase 4: output projection', 'comment'))
    gemm(False, 0, None, pre_issued=5)

    stamp()
    L.append(Ins('; ======== store partials', 'comment'))
    e(valu('v_and_b32', vBA[0], 63, V(0)))
    e(valu('v_lshlrev_b32', vBA[0], 4, vBA[0]))
    for mt in range(3):
        for r in range(4):
            i = mt * 4 + r
            b = 64 + (i % 4) * 12
            for t in range(8):
                e(valu('v_accvgpr_read_b32', V(b + t), A(acc(t, mt)[1] + r)))
            for p in range(4):
                e(valu('v_cvt_pk_bf16_f32', V(b + 8 + p), V(b + 2 * p), V(b + 2 * p + 1)))
            if i and i % 4 == 0:
                e(salu('s_add_u32', sOUT, sOUT, 4096))
            e(buf_store(V(b + 8, 4), vBA[0], SRD_WS, sOUT, (i % 4) * 1024))
    if STAMP:
        e(wait_all())
        stamp()
        e(salu('s_mov_b32', S(SRD_WS[1] + 2), 0x10000000))
        e(salu('s_lshl_b32', sT0, S(2), 2))
        e(salu('s_add_u32', sT0, sT0, sW))
        e(salu('s_lshl_b32', sT0, sT0, 7))
        e(salu('s_add_u32', sT0, sT0, 64 << 20))
        e(valu('v_mov_b32', V(1), 0))
        e(valu('v_mov_b32', V(3), 0))
        for i in range(nst[0]):
            e(valu('v_mov_b32', V(2), S(STREGS[i])))
            e(buf_store(V(2, 2), V(1), SRD_WS, sT0, i * 8))
            e(wait_all())
    e(Ins('L_exit:', 'label'))
    e(Ins('s_endpgm', 'other'))
    lines, stats = finalize(L)
    print('main', stats, len(lines), file=sys.stderr)
    for name, sp in slow_paths:
        lines.append(name + ':')
        l2, _ = finalize(sp, entry_pad=True)
        lines += l2
    return lines


def build_reduce():
    L = []
    e = L.append
    e(Ins('s_cmp_ge_u32 s2, 384', 'salu', ['s2'], ['scc']))
    e(Ins('s_cbranch_scc1 R_exit', 'branch', ['scc']))
    e(Ins('s_load_dwordx2 s[4:5], s[0:1], 80', 'smem', [], regs(S(4, 2))))
    e(Ins('s_load_dwordx2 s[6:7], s[0:1], 96', 'smem', [], regs(S(6, 2))))
    e(salu('s_mul_i32', S(20), S(2), 5462))
    e(salu('s_lshr_b32', S(20), S(20), 16))
    e(salu('s_mul_i32', S(21), S(20), 12))
    e(salu('s_sub_u32', S(21), S(2), S(21)))
    e(salu('s_mul_i32', S(26), S(21), 11))
    e(salu('s_lshr_b32', S(26), S(26), 5))
    e(salu('s_mul_i32', S(27), S(26), 3))
    e(salu('s_sub_u32', S(27), S(21), S(27)))
    e(valu('v_lshlrev_b32', V(3), 4, V(0)))
    e(salu('s_mul_i32', S(23), S(20), 8 * 49152))
    e(salu('s_mul_i32', S(28), S(26), 12288))
    e(salu('s_add_u32', S(23), S(23), S(28)))
    e(salu('s_lshl_b32', S(28), S(27), 12))
    e(salu('s_add_u32', S(23), S(23), S(28)))
    e(valu('v_and_b32', V(1), 15, V(0)))
    e(valu('v_lshrrev_b32', V(2), 4, V(0)))
    e(valu('v_lshlrev_b32', V(2), 6, V(2)))
    e(valu('v_lshl_add_u32', V(4), V(1), 11, V(2)))
    e(salu('s_and_b32', S(24), S(20), 15))
    e(salu('s_mul_i32', S(24), S(24), 48 * 2048))
    e(salu('s_lshr_b32', S(25), S(20), 4))
    e(salu('s_lshl_b32', S(25), S(25), 10))
    e(salu('s_add_u32', S(24), S(24), S(25)))
    e(salu('s_lshl_b32', S(25), S(27), 15))
    e(salu('s_add_u32', S(24), S(24), S(25)))
    e(salu('s_lshl_b32', S(25), S(26), 8))
    e(salu('s_add_u32', S(24), S(24), S(25)))
    e(Ins('s_waitcnt lgkmcnt(0)', 'other'))
    e(salu('s_mov_b64', S(8, 2), S(4, 2)))
    e(salu('s_mov_b32', S(10), 16 * 48 * 1024 * 2))
    e(salu('s_mov_b32', S(11), 0x20000))
    e(salu('s_mov_b64', S(12, 2), S(6, 2)))
    e(salu('s_mov_b32', S(14), 32 * 8 * 48 * 1024))
    e(salu('s_mov_b32', S(15), 0x20000))
    B0 = 8
    for hh in range(8):
        if hh:
            e(salu('s_add_u32', S(23), S(23), 49152))
        for r in range(4):
            e(buf_load(V(B0 + (hh * 4 + r) * 4, 4), V(3), S(12, 4), S(23), r * 1024))
    AC = B0 + 128
    e(salu('s_mov_b32', S(30), 0xffff0000))
    for hh in range(8):
        for i in range(16):
            src = V(B0 + hh * 16 + i)
            lo, hi = V(AC + 2 * i), V(AC + 2 * i + 1)
            if hh == 0:
                e(valu('v_lshlrev_b32', lo, 16, src))
                e(valu('v_and_b32', hi, S(30), src))
            else:
                t0, t1 = V(AC + 32 + (i & 1) * 2), V(AC + 33 + (i & 1) * 2)
                e(valu('v_lshlrev_b32', t0, 16, src))
                e(valu('v_and_b32', t1, S(30), src))
                e(valu('v_add_f32', lo, lo, t0))
                e(valu('v_add_f32', hi, hi, t1))
    for r in range(4):
        for p in range(4):
            e(valu('v_cvt_pk_bf16_f32', V(B0 + r * 4 + p), V(AC + r * 8 + 2 * p), V(AC + r * 8 + 2 * p + 1)))
        e(buf_store(V(B0 + r * 4, 4), V(4), S(8, 4), S(24), r * 16))
    e(Ins('R_exit:', 'label'))
    e(Ins('s_endpgm', 'other'))
    lines, stats = finalize(L)
    return lines


def kd(name, vgpr, accum, sgpr):
    return f""".amdhsa_kernel {name}
  .amdhsa_next_free_vgpr {vgpr}
  .amdhsa_next_free_sgpr {sgpr}
  .amdhsa_accum_offset {accum}
  .amdhsa_group_segment_fixed_size 0
  .amdhsa_kernarg_size 104
  .amdhsa_user_sgpr_count 2
  .amdhsa_user_sgpr_kernarg_segment_ptr 1
  .amdhsa_system_sgpr_workgroup_id_x 1
.end_amdhsa_kernel
"""


for wg in range(384 + 16):
    assert (wg * 5462) >> 16 == wg // 12
for rq in range(12):
    assert (rq * 11) >> 5 == rq // 3

main = build_main()
red = build_reduce()
txt = HDR
txt += f'; @launch kernel={NAME}_kernel grid=(256,1,1) block=(256,1,1) lds=163840\n'
txt += '; @launch kernel=reduce_kernel grid=(384,1,1) block=(64,1,1) lds=0\n'
txt += '.amdgcn_target "amdgcn-amd-amdhsa--gfx950"\n.text\n'
txt += f'.globl {NAME}_kernel\n.p2align 8\n.type {NAME}_kernel,@function\n{NAME}_kernel:\n'
txt += '\n'.join(main) + '\n'
txt += '.globl reduce_kernel\n.p2align 8\n.type reduce_kernel,@function\nreduce_kernel:\n'
txt += '\n'.join(red) + '\n'
txt += '.section .rodata,"a"\n.p2align 6\n'
txt += kd(f'{NAME}_kernel', 512, 256, 96)
txt += '.p2align 6\n'
txt += kd('reduce_kernel', 176, 176, 32)
open(OUT, 'w').write(txt)
print('wrote', OUT, len(txt), file=sys.stderr)
```

```python
import sys
import struct
from asmlib import *
import os
KVFLAGS = os.environ.get('KVFLAGS', 'nt')
WFLAGS = os.environ.get('WFLAGS', '')

NAME = 'concat_heads__gqa_block_cached__gqa_block_cached__near_ridge'
OUT = sys.argv[1] if len(sys.argv) > 1 else f'cdna_kernels/{NAME}.s'

HDR = open(f'cdna_kernels/{NAME}.s.ref').read().split('; Override launch')[0]


def f32bits(x):
    return struct.unpack('<I', struct.pack('<f', x))[0]


CSCALE = f32bits(1.4426950408889634 / (128.0 ** 0.5))
THRESH = f32bits(16.0)

sPTR = 16
SRD_X, SRD_K, SRD_V, SRD_WQ, SRD_WO, SRD_WS = S(44, 4), S(48, 4), S(52, 4), S(56, 4), S(60, 4), S(64, 4)
sH, sB, sBLK, sW = S(70), S(71), S(72), S(73)
sX = [S(74), S(75), S(76)]
sWOFF = S(77)
sKV = S(78)
sT0, sT1 = S(79), S(80)
sSELLO, sSELHI = S(82), S(83)
sLDSW = S(84)
sOUT = S(85)
sC = S(86)
sTH = S(87)
sWBASE = S(88)
sKK = S(89)
sT2 = S(92)

vJ, vG = V(1), V(2)
vOFFWQ0 = V(3)
vBF = V(4)
vBB = V(5)
vBA = [V(6), V(7)]
vOFFK = [V(12 + i) for i in range(4)]
vOFFV = [V(16 + i) for i in range(2)]
vKB = [V(18 + s) for s in range(4)]
vVB = [V(22 + d) for d in range(8)]
vOFFWO = [V(30), V(31)]
TR = 32
RAW = 64
NB = 6
NEGM = 32
ONES = V(44, 4)
vKA = [V(48 + s) for s in range(4)]
vVA = [V(52 + d) for d in range(8)]
vTMP = [V(60 + i) for i in range(4)]
SB = [64, 112]
QF = 160
PF = 224
vT = [V(248 + i) for i in range(8)]
ACC = 0
XB = 96
OACC = 0
LACC = 96
KF = 128
VF = 192


def acc(t, mt):
    return A(ACC + (t * 3 + mt) * 4, 4)


def tr(t):
    return V(TR + t * 4, 4)


def raw(buf, e):
    return V(RAW + buf * 32 + e * 4, 4)


def xf(ks, mt):
    return A(XB + ((ks % 3) * 3 + mt) * 4, 4)


def sreg(par, kt, qt):
    return V(SB[par] + (kt * 3 + qt) * 4, 4)


def qf(qt, s):
    return V(QF + (qt * 4 + s) * 4, 4)


def pf(ks, qt):
    return V(PF + (ks * 3 + qt) * 4, 4)


def negm(qt):
    return V(NEGM + qt * 4, 4)


def oacc(dt, qt):
    return A(OACC + (dt * 3 + qt) * 4, 4)


def lacc(qt):
    return A(LACC + qt * 4, 4)


def kf(kt, s):
    return A(KF + (kt * 4 + s) * 4, 4)


def vf(dt, ks):
    return A(VF + (dt * 2 + ks) * 4, 4)


def perms(buf, t):
    o = []
    for p in range(4):
        lo = V(RAW + buf * 32 + (2 * p) * 4 + t // 2)
        hi = V(RAW + buf * 32 + (2 * p + 1) * 4 + t // 2)
        o.append(valu('v_perm_b32', V(TR + t * 4 + p), hi, lo, sSELHI if t & 1 else sSELLO))
    return o


def dma_unit(kind, c, i):
    slot = (c % 5) * 32768 + (16384 if kind == 'V' else 0)
    voff = vOFFK[i] if kind == 'K' else vOFFV[i & 1]
    return [salu('s_add_u32', 'm0', sLDSW, slot),
            salu('s_add_u32', sT0, sKV, c * 16384),
            dma(voff, SRD_K if kind == 'K' else SRD_V, sT0, i * 1024, tag=f'{kind}{c}', flags=KVFLAGS)]


class DmaQ:
    def __init__(self):
        self.units = [(kind, c, i) for c in range(8) for kind in 'KV' for i in range(4)]
        self.pos = 0
        self.limit = 0

    def allow(self, n):
        self.limit = max(self.limit, n)

    def pop(self, n=1):
        o = []
        while n > 0 and self.pos < min(self.limit, len(self.units)):
            o += dma_unit(*self.units[self.pos])
            self.pos += 1
            n -= 1
        return o

    def ensure(self, n):
        return self.pop(max(0, n - self.pos))


def sprinkle(stream, q, every, first=0):
    out = []
    k = -first
    for I in stream:
        out.append(I)
        if I.kind == 'mfma':
            k += 1
            if k > 0 and k % every == 0:
                out += q.pop(1)
    return out


def gemm_phase(L, is_q, bfrag, extra=None):
    def wloads(ks):
        o = []
        buf = (ks + (0 if is_q else 3)) % NB
        o.append(salu('s_add_u32', sKK, sB, ks))
        o.append(salu('s_and_b32', sKK, sKK, 15))
        o.append(salu('s_lshl_b32', sKK, sKK, 18 if is_q else 15))
        o.append(salu('s_add_u32', sWOFF, sWBASE, sKK))
        if is_q:
            for e in range(8):
                if e:
                    o.append(salu('s_add_u32', sWOFF, sWOFF, 8192))
                o.append(buf_load(raw(buf, e), vOFFWQ0, SRD_WQ, sWOFF, flags=WFLAGS))
        else:
            for e in range(8):
                o.append(buf_load(raw(buf, e), vOFFWO[e >> 2], SRD_WO, sWOFF, (e & 3) * 1024, flags=WFLAGS))
        return o

    def xloads(ks):
        return []

    return wloads, xloads


STAMP = int(os.environ.get('STAMP', '0'))
STREGS = [3, 4, 5, 6, 7, 8, 9, 10, 11, 12, 13, 14, 15, 42, 43, 68]


def build_main():
    L = []
    e = L.append
    ex = L.extend
    slow_paths = []
    nst = [0]

    def stamp():
        if not STAMP:
            return
        e(wait_all(vm=False, lgkm=True))
        e(Ins('s_memtime s[90:91]', 'smem', [], ['s90', 's91']))
        e(Ins('s_waitcnt lgkmcnt(0)', 'other'))
        e(salu('s_mov_b32', S(STREGS[nst[0]]), S(90)))
        nst[0] += 1

    e(Ins('s_cmp_ge_u32 s2, 256', 'salu', ['s2'], ['scc']))
    e(Ins('s_cbranch_scc1 L_exit', 'branch', ['scc']))
    e(Ins('s_load_dwordx16 s[16:31], s[0:1], 0', 'smem', [], regs(S(16, 16))))
    e(Ins('s_load_dwordx8 s[32:39], s[0:1], 64', 'smem', [], regs(S(32, 8))))
    e(Ins('s_load_dwordx2 s[40:41], s[0:1], 96', 'smem', [], regs(S(40, 2))))
    e(salu('s_and_b32', sH, S(2), 7))
    e(salu('s_lshr_b32', sT0, S(2), 3))
    e(salu('s_and_b32', sB, sT0, 15))
    e(salu('s_lshr_b32', sBLK, sT0, 4))
    e(valu('v_lshrrev_b32', vT[0], 6, V(0)))
    e(valu('v_readfirstlane_b32', sW, vT[0]))
    e(valu('v_and_b32', vJ, 15, V(0)))
    e(valu('v_bfe_u32', vG, V(0), 4, 2))
    e(salu('s_mov_b32', sSELLO, 0x05040100))
    e(salu('s_mov_b32', sSELHI, 0x07060302))
    e(salu('s_mov_b32', sC, CSCALE))
    e(salu('s_mov_b32', sTH, THRESH))
    e(valu('v_lshlrev_b32', vT[0], 4, vJ))
    e(valu('v_lshl_add_u32', vOFFWQ0, vG, 16, vT[0]))
    e(valu('v_add_u32', vBF, 4, vJ))
    e(valu('v_and_b32', vBF, 15, vBF))
    e(valu('v_lshlrev_b32', vBB, 10, vJ))
    e(valu('v_lshl_add_u32', vOFFWO[0], vG, 13, vT[0]))
    e(valu('v_add_u32', vOFFWO[1], 4096, vOFFWO[0]))
    for i in range(4):
        e(valu('v_add_u32', vT[1], 4 * i + 4, vG))
        e(valu('v_and_b32', vT[1], 15, vT[1]))
        e(valu('v_xor_b32', vT[1], vT[1], vJ))
        e(valu('v_lshlrev_b32', vT[1], 4, vT[1]))
        e(valu('v_lshl_add_u32', vOFFK[i], vG, 8, vT[1]))
    for i in range(2):
        e(valu('v_add_u32', vT[1], 4 * i, vG))
        e(valu('v_lshlrev_b32', vT[1], 1, vT[1]))
        e(valu('v_xor_b32', vT[1], vT[1], vJ))
        e(valu('v_lshlrev_b32', vT[1], 4, vT[1]))
        e(valu('v_lshl_add_u32', vOFFV[i], vG, 8, vT[1]))
    e(valu('v_add_u32', vT[2], 4, vJ))
    e(valu('v_and_b32', vT[2], 15, vT[2]))
    for s in range(4):
        e(valu('v_lshl_add_u32', vT[1], vG, 2, s))
        e(valu('v_xor_b32', vT[1], vT[1], vT[2]))
        e(valu('v_lshlrev_b32', vT[1], 4, vT[1]))
        e(valu('v_lshl_add_u32', vKB[s], vJ, 8, vT[1]))
    e(valu('v_lshrrev_b32', vT[3], 2, vJ))
    e(valu('v_lshl_add_u32', vT[4], vG, 2, vT[3]))
    e(valu('v_and_b32', vT[5], 7, vT[4]))
    e(valu('v_and_b32', vT[6], 3, vJ))
    e(valu('v_lshlrev_b32', vT[6], 3, vT[6]))
    e(valu('v_lshl_add_u32', vT[6], vT[4], 8, vT[6]))
    for dt in range(8):
        e(valu('v_xor_b32', vT[1], dt, vT[5]))
        e(valu('v_lshl_add_u32', vVB[dt], vT[1], 5, vT[6]))
    e(Ins('s_waitcnt lgkmcnt(0)', 'other'))
    e(Ins(f's_cmp_eq_u32 {fmt(sBLK)}, 0', 'salu', regs(sBLK), ['scc']))
    for srd, pa, size in ((SRD_X, 16, 786432), (SRD_K, 18, 16777216), (SRD_V, 20, 16777216),
                          (SRD_WQ, 22, 4194304), (SRD_WO, 24, 4194304)):
        e(Ins(f's_cselect_b64 s[{srd[1]}:{srd[1] + 1}], s[{pa}:{pa + 1}], s[{pa + 10}:{pa + 11}]', 'salu',
              ['scc'] + regs(S(pa, 2)) + regs(S(pa + 10, 2)), regs(S(srd[1], 2))))
        e(salu('s_mov_b32', S(srd[1] + 2), size))
        e(salu('s_mov_b32', S(srd[1] + 3), 0x20000))
    e(salu('s_mov_b64', S(SRD_WS[1], 2), S(40, 2)))
    e(salu('s_mov_b32', S(SRD_WS[1] + 2), 32 * 8 * 48 * 1024))
    e(salu('s_mov_b32', S(SRD_WS[1] + 3), 0x20000))
    e(salu('s_mul_i32', sX[0], sB, 49152))
    e(salu('s_add_u32', sX[1], sX[0], 16384))
    e(salu('s_add_u32', sX[2], sX[0], 32768))
    e(salu('s_lshl_b32', sT0, sH, 2))
    e(salu('s_add_u32', sT0, sT0, sW))
    e(salu('s_lshl_b32', sWBASE, sT0, 8))
    e(salu('s_lshl_b32', sLDSW, sW, 12))
    e(salu('s_lshl_b32', sT0, sB, 3))
    e(salu('s_add_u32', sT0, sT0, sH))
    e(salu('s_lshl_b32', sKV, sT0, 17))
    e(salu('s_add_u32', sKV, sKV, sLDSW))
    e(salu('s_lshl_b32', sT1, sBLK, 7))
    e(salu('s_add_u32', sT0, sT0, sT1))
    e(salu('s_mul_i32', sOUT, sT0, 48 * 1024))
    e(salu('s_mul_i32', sT1, sW, 12288))
    e(salu('s_add_u32', sOUT, sOUT, sT1))

    XREG = 112 * 1024
    vXA = V(8)
    vXS = V(9)
    Q = DmaQ()

    def bfrag_reads(region, ks):
        o = []
        if region == XREG:
            if ks >= 4 and ks % 4 == 0:
                o.append(wait_vm_tag(f'X{ks // 4}'))
                o.append(barrier())
            for mt in range(3):
                o.append(ds_read('ds_read_b128', xf(ks, mt), vXA, (ks * 3 + mt) * 1024))
            return o
        o.append(salu('s_add_u32', sKK, sB, ks))
        o.append(salu('s_and_b32', sT2, sKK, 3))
        o.append(salu('s_lshl_b32', sT2, sT2, 2))
        o.append(salu('s_bfe_u32', sKK, sKK, 0x20002))
        o.append(salu('s_lshl_b32', sKK, sKK, 8))
        o.append(salu('s_add_u32', sKK, sKK, region))
        ad = vBA[ks & 1]
        o.append(valu('v_add_u32', ad, sT2, vG))
        o.append(valu('v_xor_b32', ad, ad, vBF))
        o.append(valu('v_lshl_add_u32', ad, ad, 4, vBB))
        o.append(valu('v_add_u32', ad, sKK, ad))
        for mt in range(3):
            o.append(ds_read('ds_read_b128', xf(ks, mt), ad, mt * 16384))
        return o

    def gemm(is_q, region, extra, pre_issued=0, ramp=False):
        wloads, _ = gemm_phase(L, is_q, None)
        nxt = pre_issued
        if not ramp:
            while nxt < NB:
                ex(wloads(nxt))
                nxt += 1
        ex(bfrag_reads(region, 0))
        ex(bfrag_reads(region, 1))
        boff = 0 if is_q else 3
        for t in range(8):
            ex(perms(boff, t))
        ex(wloads(nxt))
        nxt += 1
        for ks in range(16):
            if STAMP == 2 and ks % 4 == 0:
                stamp()
            if ks + 2 < 16:
                ex(bfrag_reads(region, ks + 2))
            for t in range(8):
                for mt in range(3):
                    e(mfma(acc(t, mt), tr(t), xf(ks, mt), acc(t, mt) if ks else 0))
                if ks + 1 < 16:
                    ex(perms((ks + 1 + boff) % NB, t))
                if t == 3 and nxt < 16 and nxt < ks + NB:
                    ex(wloads(nxt))
                    nxt += 1
            if nxt < 16 and nxt <= ks + 1 + NB:
                ex(wloads(nxt))
                nxt += 1
            if extra and ks in extra:
                ex(extra[ks]())

    L.append(Ins('; ======== phase 1: Q projection', 'comment'))
    stamp()
    e(valu('v_and_b32', V(32), 63, V(0)))
    e(valu('v_lshrrev_b32', V(33), 2, V(32)))
    e(valu('v_and_b32', V(34), 3, V(32)))
    e(valu('v_lshlrev_b32', V(34), 4, V(34)))
    e(valu('v_lshl_add_u32', vXS, V(33), 10, V(34)))
    e(valu('v_lshlrev_b32', V(34), 4, vG))
    e(valu('v_lshl_add_u32', vXA, vJ, 6, V(34)))
    e(valu('v_add_u32', vXA, XREG, vXA))

    def xdma(n):
        o = []
        o.append(salu('s_add_u32', sT0, sW, 4 * n))
        o.append(salu('s_mul_i32', sT1, sT0, 43))
        o.append(salu('s_lshr_b32', sT1, sT1, 7))
        o.append(salu('s_mul_i32', sT2, sT1, 3))
        o.append(salu('s_sub_u32', sT2, sT0, sT2))
        o.append(salu('s_lshl_b32', sT0, sT0, 10))
        o.append(salu('s_add_u32', 'm0', sT0, XREG))
        o.append(salu('s_add_u32', sT1, sT1, sB))
        o.append(salu('s_and_b32', sT1, sT1, 15))
        o.append(salu('s_lshl_b32', sT1, sT1, 6))
        o.append(salu('s_lshl_b32', sT2, sT2, 14))
        o.append(salu('s_add_u32', sT1, sT1, sT2))
        o.append(salu('s_add_u32', sT1, sT1, sX[0]))
        o.append(dma(vXS, SRD_X, sT1, 0, tag=f'X{n // 3}'))
        return o
    wl1, _ = gemm_phase(L, True, None)
    for n in range(3):
        ex(xdma(n))
    ex(wl1(0))
    for n in range(3, 12):
        ex(xdma(n))
    ex(wl1(1))
    e(wait_vm_tag('X0'))
    e(barrier())
    if STAMP == 2:
        stamp()
    Q.allow(28)
    P1START = int(os.environ.get('P1START', '2'))
    P1PER = int(os.environ.get('P1PER', '1'))
    extra = {ks: (lambda: Q.pop(P1PER)) for ks in range(P1START, 16)}
    gemm(True, XREG, extra, pre_issued=2, ramp=True)

    stamp()
    L.append(Ins('; ======== Q fragments', 'comment'))
    n = 0
    for qt in range(3):
        for s in range(4):
            for p in range(4):
                a0 = V(208 + (n % 8) * 2)
                a1 = V(209 + (n % 8) * 2)
                n += 1
                e(valu('v_accvgpr_read_b32', a0, A(acc(2 * p, qt)[1] + s)))
                e(valu('v_accvgpr_read_b32', a1, A(acc(2 * p + 1, qt)[1] + s)))
                e(valu('v_mul_f32', a0, sC, a0))
                e(valu('v_mul_f32', a1, sC, a1))
                e(valu('v_cvt_pk_bf16_f32', V(qf(qt, s)[1] + p), a0, a1))
    for r in range(4):
        e(valu('v_mov_b32', V(ONES[1] + r), 0x3f803f80))
    for i in range(108):
        e(valu('v_accvgpr_write_b32', A(OACC + i), 0))

    def kaddr(c):
        return [valu('v_add_u32', vKA[s], (c % 5) * 32768, vKB[s]) for s in range(4)]

    def vaddr(c):
        return [valu('v_add_u32', vVA[d], (c % 5) * 32768 + 16384, vVB[d]) for d in range(8)]

    def kreads():
        return [ds_read('ds_read_b128', kf(kt, s), vKA[s], kt * 4096) for kt in range(4) for s in range(4)]

    def vreads():
        o = []
        for ks in range(2):
            for dt in range(8):
                for hf in range(2):
                    o.append(ds_read('ds_read_b64_tr_b16', A(vf(dt, ks)[1] + 2 * hf, 2), vVA[dt], ks * 8192 + hf * 4096))
        return o

    def qk_mfmas(par, first):
        o = []
        for kt in range(4):
            for s in range(4):
                for qt in range(3):
                    C = sreg(par, kt, qt) if s else (0 if first else negm(qt))
                    o.append(mfma(sreg(par, kt, qt), kf(kt, s), qf(qt, s), C))
        return o

    def exp_ops(par):
        o = []
        for kt in range(4):
            for qt in range(3):
                b = sreg(par, kt, qt)[1]
                for r in range(4):
                    o.append(valu('v_exp_f32', V(b + r), V(b + r)))
                pb = pf(kt // 2, qt)[1] + (kt & 1) * 2
                o.append(valu('v_cvt_pk_bf16_f32', V(pb), V(b), V(b + 1)))
                o.append(valu('v_cvt_pk_bf16_f32', V(pb + 1), V(b + 2), V(b + 3)))
        return o

    def pv_mfmas():
        o = []
        for ks in range(2):
            for dt in range(8):
                for qt in range(3):
                    o.append(mfma(oacc(dt, qt), vf(dt, ks), pf(ks, qt), oacc(dt, qt)))
            for qt in range(3):
                o.append(mfma(lacc(qt), ONES, pf(ks, qt), lacc(qt)))
        return o

    def max_all(par):
        o = []
        b = SB[par]
        o.append(valu('v_max3_f32', vTMP[0], V(b), V(b + 1), V(b + 2)))
        for i in range(3, 47, 2):
            o.append(valu('v_max3_f32', vTMP[0], vTMP[0], V(b + i), V(b + i + 1)))
        o.append(valu('v_max_f32', vTMP[0], vTMP[0], V(b + 47)))
        return o

    def rebase(par, first):
        o = []
        o.append(valu('v_and_b32', vT[6], 63, V(0)))
        o.append(valu('v_xor_b32', vT[4], 16, vT[6]))
        o.append(valu('v_lshlrev_b32', vT[4], 2, vT[4]))
        o.append(valu('v_xor_b32', vT[5], 32, vT[6]))
        o.append(valu('v_lshlrev_b32', vT[5], 2, vT[5]))
        for qt in range(3):
            m = vT[qt]
            vals = [V(sreg(par, kt, qt)[1] + r) for kt in range(4) for r in range(4)]
            o.append(valu('v_max3_f32', m, vals[0], vals[1], vals[2]))
            for i in range(3, 15, 2):
                o.append(valu('v_max3_f32', m, m, vals[i], vals[i + 1]))
            o.append(valu('v_max_f32', m, m, vals[15]))
            o.append(ds_bperm(vT[7], vT[4], m))
            o.append(valu('v_max_f32', m, m, vT[7]))
            o.append(ds_bperm(vT[7], vT[5], m))
            o.append(valu('v_max_f32', m, m, vT[7]))
            if not first:
                o.append(valu('v_max_f32', m, 0, m))
            for v in vals:
                o.append(valu('v_sub_f32', v, v, m))
            if first:
                for r in range(4):
                    o.append(valu('v_sub_f32', V(negm(qt)[1] + r), 0, m))
            else:
                for r in range(4):
                    o.append(valu('v_sub_f32', V(negm(qt)[1] + r), V(negm(qt)[1] + r), m))
                o.append(valu('v_sub_f32', vT[7], 0, m))
                o.append(valu('v_exp_f32', vT[7], vT[7]))
                accs = [A(oacc(dt, qt)[1] + r) for dt in range(8) for r in range(4)] + [A(lacc(qt)[1] + r) for r in range(4)]
                for a_ in accs:
                    o.append(valu('v_accvgpr_read_b32', vT[6], a_))
                    o.append(valu('v_mul_f32', vT[6], vT[6], vT[7]))
                    o.append(valu('v_accvgpr_write_b32', a_, vT[6]))
        return o

    L.append(Ins('; ======== attention prologue', 'comment'))
    ex(kaddr(0))
    ex(Q.ensure(4))
    e(wait_vm_tag('K0'))
    e(wait_all(vm=False, lgkm=True))
    e(barrier())
    Q.allow(40)
    EV = int(os.environ.get('EV', '11'))
    ex(kreads())
    ex(sprinkle(qk_mfmas(0, True), Q, 8))
    ex(rebase(0, True))

    wl4 = None
    for c in range(8):
        par = c & 1
        if STAMP == 1 or c == 0:
            stamp()
        L.append(Ins(f'; ======== attention chunk {c}', 'comment'))
        ex(Q.ensure(min(64, 8 * c + 12)))
        if c < 7:
            ex(kaddr(c + 1))
            e(wait_vm_tag(f'K{c + 1}'))
        ex(vaddr(c))
        e(wait_vm_tag(f'V{c}'))
        e(wait_all(vm=False, lgkm=True))
        e(barrier())
        Q.allow(8 * (c + 5))
        body0 = len(L)
        pv = pv_mfmas()
        eo = exp_ops(par)
        vr = vreads()
        if c < 7:
            kr = kreads()
            qk = qk_mfmas(par ^ 1, False)
            mx = max_all(par ^ 1)
            ex(kr[:6])
            ex(interleave(qk[:24], kr[6:] + interleave(eo[:36], vr[:16])))
            ex(interleave(pv[:27], interleave(eo[36:], vr[16:])))
            ex(interleave(qk[24:], mx[:11], start=4))
        else:
            ex(interleave(eo[:36], vr[:16]))
            ex(interleave(pv[:27], interleave(eo[36:], vr[16:])))
        if c == 6:
            e(salu('s_lshl_b32', sT0, sH, 19))
            e(salu('s_lshl_b32', sT1, sW, 8))
            e(salu('s_add_u32', sWBASE, sT0, sT1))
            wl4, _ = gemm_phase(L, False, None)
            ex(wl4(0))
            ex(wl4(1))
        if c < 7:
            ex(interleave(pv[27:], mx[11:], start=6))
            L[body0:] = sprinkle(L[body0:], Q, EV)
            e(Ins(f"v_cmp_lt_f32 vcc, {fmt(sTH)}, {fmt(vTMP[0])}", 'valu', regs(vTMP[0]) + regs(sTH), ['vcc'], {'op': 'v_cmp'}))
            e(nop(3))
            e(Ins(f's_cbranch_vccnz L_slow{c}', 'branch', ['vcc']))
            e(Ins(f'L_back{c}:', 'label'))
            sp = rebase(par ^ 1, False)
            sp.append(nop(7))
            sp.append(nop(7))
            sp.append(Ins(f's_branch L_back{c}', 'branch'))
            slow_paths.append((f'L_slow{c}', sp))
        else:
            ex(pv[27:])

    stamp()
    L.append(Ins('; ======== O normalise -> LDS', 'comment'))
    ex(wl4(2))
    ex(wl4(3))
    ex(wl4(4))
    nT = [V(32 + i) for i in range(8)]
    e(valu('v_lshrrev_b32', nT[3], 1, vG))
    e(valu('v_and_b32', nT[4], 1, vG))
    e(valu('v_lshlrev_b32', nT[4], 3, nT[4]))
    e(valu('v_add_u32', nT[4], nT[4], vBB))
    e(salu('s_lshl_b32', sT0, sW, 8))
    e(valu('v_add_u32', nT[4], sT0, nT[4]))
    OW = [V(48 + d) for d in range(8)]
    for dt in range(8):
        e(valu('v_add_u32', nT[5], 2 * dt, nT[3]))
        e(valu('v_xor_b32', nT[5], nT[5], vBF))
        e(valu('v_lshl_add_u32', OW[dt], nT[5], 4, nT[4]))
    for qt in range(3):
        e(valu('v_accvgpr_read_b32', nT[6], A(lacc(qt)[1])))
        e(valu('v_rcp_f32', nT[6], nT[6]))
        for dt in range(8):
            b = 128 + ((qt * 8 + dt) % 5) * 6
            for r in range(4):
                e(valu('v_accvgpr_read_b32', V(b + r), A(oacc(dt, qt)[1] + r)))
                e(valu('v_mul_f32', V(b + r), V(b + r), nT[6]))
            e(valu('v_cvt_pk_bf16_f32', V(b + 4), V(b), V(b + 1)))
            e(valu('v_cvt_pk_bf16_f32', V(b + 5), V(b + 2), V(b + 3)))
            e(ds_write('ds_write_b64', OW[dt], V(b + 4, 2), qt * 16384))
    e(wait_all(vm=False, lgkm=True))
    e(barrier())
    stamp()
    L.append(Ins('; ======== phase 4: output projection', 'comment'))
    gemm(False, 0, None, pre_issued=5)

    stamp()
    L.append(Ins('; ======== store partials', 'comment'))
    e(valu('v_and_b32', vBA[0], 63, V(0)))
    e(valu('v_lshlrev_b32', vBA[0], 4, vBA[0]))
    for mt in range(3):
        for r in range(4):
            i = mt * 4 + r
            b = 64 + (i % 4) * 12
            for t in range(8):
                e(valu('v_accvgpr_read_b32', V(b + t), A(acc(t, mt)[1] + r)))
            for p in range(4):
                e(valu('v_cvt_pk_bf16_f32', V(b + 8 + p), V(b + 2 * p), V(b + 2 * p + 1)))
            if i and i % 4 == 0:
                e(salu('s_add_u32', sOUT, sOUT, 4096))
            e(buf_store(V(b + 8, 4), vBA[0], SRD_WS, sOUT, (i % 4) * 1024))
    if STAMP:
        e(wait_all())
        stamp()
        e(salu('s_mov_b32', S(SRD_WS[1] + 2), 0x10000000))
        e(salu('s_lshl_b32', sT0, S(2), 2))
        e(salu('s_add_u32', sT0, sT0, sW))
        e(salu('s_lshl_b32', sT0, sT0, 7))
        e(salu('s_add_u32', sT0, sT0, 64 << 20))
        e(valu('v_mov_b32', V(1), 0))
        e(valu('v_mov_b32', V(3), 0))
        for i in range(nst[0]):
            e(valu('v_mov_b32', V(2), S(STREGS[i])))
            e(buf_store(V(2, 2), V(1), SRD_WS, sT0, i * 8))
            e(wait_all())
    e(Ins('L_exit:', 'label'))
    e(Ins('s_endpgm', 'other'))
    lines, stats = finalize(L)
    print('main', stats, len(lines), file=sys.stderr)
    for name, sp in slow_paths:
        lines.append(name + ':')
        l2, _ = finalize(sp, entry_pad=True)
        lines += l2
    return lines


def build_reduce():
    L = []
    e = L.append
    e(Ins('s_cmp_ge_u32 s2, 384', 'salu', ['s2'], ['scc']))
    e(Ins('s_cbranch_scc1 R_exit', 'branch', ['scc']))
    e(Ins('s_load_dwordx2 s[4:5], s[0:1], 80', 'smem', [], regs(S(4, 2))))
    e(Ins('s_load_dwordx2 s[6:7], s[0:1], 96', 'smem', [], regs(S(6, 2))))
    e(salu('s_mul_i32', S(20), S(2), 5462))
    e(salu('s_lshr_b32', S(20), S(20), 16))
    e(salu('s_mul_i32', S(21), S(20), 12))
    e(salu('s_sub_u32', S(21), S(2), S(21)))
    e(salu('s_mul_i32', S(26), S(21), 11))
    e(salu('s_lshr_b32', S(26), S(26), 5))
    e(salu('s_mul_i32', S(27), S(26), 3))
    e(salu('s_sub_u32', S(27), S(21), S(27)))
    e(valu('v_lshlrev_b32', V(3), 4, V(0)))
    e(salu('s_mul_i32', S(23), S(20), 8 * 49152))
    e(salu('s_mul_i32', S(28), S(26), 12288))
    e(salu('s_add_u32', S(23), S(23), S(28)))
    e(salu('s_lshl_b32', S(28), S(27), 12))
    e(salu('s_add_u32', S(23), S(23), S(28)))
    e(valu('v_and_b32', V(1), 15, V(0)))
    e(valu('v_lshrrev_b32', V(2), 4, V(0)))
    e(valu('v_lshlrev_b32', V(2), 6, V(2)))
    e(valu('v_lshl_add_u32', V(4), V(1), 11, V(2)))
    e(salu('s_and_b32', S(24), S(20), 15))
    e(salu('s_mul_i32', S(24), S(24), 48 * 2048))
    e(salu('s_lshr_b32', S(25), S(20), 4))
    e(salu('s_lshl_b32', S(25), S(25), 10))
    e(salu('s_add_u32', S(24), S(24), S(25)))
    e(salu('s_lshl_b32', S(25), S(27), 15))
    e(salu('s_add_u32', S(24), S(24), S(25)))
    e(salu('s_lshl_b32', S(25), S(26), 8))
    e(salu('s_add_u32', S(24), S(24), S(25)))
    e(Ins('s_waitcnt lgkmcnt(0)', 'other'))
    e(salu('s_mov_b64', S(8, 2), S(4, 2)))
    e(salu('s_mov_b32', S(10), 16 * 48 * 1024 * 2))
    e(salu('s_mov_b32', S(11), 0x20000))
    e(salu('s_mov_b64', S(12, 2), S(6, 2)))
    e(salu('s_mov_b32', S(14), 32 * 8 * 48 * 1024))
    e(salu('s_mov_b32', S(15), 0x20000))
    B0 = 8
    for hh in range(8):
        if hh:
            e(salu('s_add_u32', S(23), S(23), 49152))
        for r in range(4):
            e(buf_load(V(B0 + (hh * 4 + r) * 4, 4), V(3), S(12, 4), S(23), r * 1024))
    AC = B0 + 128
    e(salu('s_mov_b32', S(30), 0xffff0000))
    for hh in range(8):
        for i in range(16):
            src = V(B0 + hh * 16 + i)
            lo, hi = V(AC + 2 * i), V(AC + 2 * i + 1)
            if hh == 0:
                e(valu('v_lshlrev_b32', lo, 16, src))
                e(valu('v_and_b32', hi, S(30), src))
            else:
                t0, t1 = V(AC + 32 + (i & 1) * 2), V(AC + 33 + (i & 1) * 2)
                e(valu('v_lshlrev_b32', t0, 16, src))
                e(valu('v_and_b32', t1, S(30), src))
                e(valu('v_add_f32', lo, lo, t0))
                e(valu('v_add_f32', hi, hi, t1))
    for r in range(4):
        for p in range(4):
            e(valu('v_cvt_pk_bf16_f32', V(B0 + r * 4 + p), V(AC + r * 8 + 2 * p), V(AC + r * 8 + 2 * p + 1)))
        e(buf_store(V(B0 + r * 4, 4), V(4), S(8, 4), S(24), r * 16))
    e(Ins('R_exit:', 'label'))
    e(Ins('s_endpgm', 'other'))
    lines, stats = finalize(L)
    return lines


def kd(name, vgpr, accum, sgpr):
    return f""".amdhsa_kernel {name}
  .amdhsa_next_free_vgpr {vgpr}
  .amdhsa_next_free_sgpr {sgpr}
  .amdhsa_accum_offset {accum}
  .amdhsa_group_segment_fixed_size 0
  .amdhsa_kernarg_size 104
  .amdhsa_user_sgpr_count 2
  .amdhsa_user_sgpr_kernarg_segment_ptr 1
  .amdhsa_system_sgpr_workgroup_id_x 1
.end_amdhsa_kernel
"""


for wg in range(384 + 16):
    assert (wg * 5462) >> 16 == wg // 12
for i in range(48):
    assert (i * 43) >> 7 == i // 3
for rq in range(12):
    assert (rq * 11) >> 5 == rq // 3

main = build_main()
red = build_reduce()
txt = HDR
txt += f'; @launch kernel={NAME}_kernel grid=(256,1,1) block=(256,1,1) lds=163840\n'
txt += '; @launch kernel=reduce_kernel grid=(384,1,1) block=(64,1,1) lds=0\n'
txt += '.amdgcn_target "amdgcn-amd-amdhsa--gfx950"\n.text\n'
txt += f'.globl {NAME}_kernel\n.p2align 8\n.type {NAME}_kernel,@function\n{NAME}_kernel:\n'
txt += '\n'.join(main) + '\n'
txt += '.globl reduce_kernel\n.p2align 8\n.type reduce_kernel,@function\nreduce_kernel:\n'
txt += '\n'.join(red) + '\n'
txt += '.section .rodata,"a"\n.p2align 6\n'
txt += kd(f'{NAME}_kernel', 512, 256, 96)
txt += '.p2align 6\n'
txt += kd('reduce_kernel', 176, 176, 32)
open(OUT, 'w').write(txt)
print('wrote', OUT, len(txt), file=sys.stderr)
```

```python
import sys
import struct
from asmlib import *
import os
KVFLAGS = os.environ.get('KVFLAGS', 'nt')
WFLAGS = os.environ.get('WFLAGS', '')

NAME = 'concat_heads__gqa_block_cached__gqa_block_cached__near_ridge'
OUT = sys.argv[1] if len(sys.argv) > 1 else f'cdna_kernels/{NAME}.s'

HDR = open(f'cdna_kernels/{NAME}.s.ref').read().split('; Override launch')[0]


def f32bits(x):
    return struct.unpack('<I', struct.pack('<f', x))[0]


CSCALE = f32bits(1.4426950408889634 / (128.0 ** 0.5))
THRESH = f32bits(16.0)

sPTR = 16
SRD_X, SRD_K, SRD_V, SRD_WQ, SRD_WO, SRD_WS = S(44, 4), S(48, 4), S(52, 4), S(56, 4), S(60, 4), S(64, 4)
sH, sB, sBLK, sW = S(70), S(71), S(72), S(73)
sX = [S(74), S(75), S(76)]
sWOFF = S(77)
sKV = S(78)
sT0, sT1 = S(79), S(80)
sSELLO, sSELHI = S(82), S(83)
sLDSW = S(84)
sOUT = S(85)
sC = S(86)
sTH = S(87)
sWBASE = S(88)
sKK = S(89)
sT2 = S(92)

vJ, vG = V(1), V(2)
vOFFWQ0 = V(3)
vBF = V(4)
vBB = V(5)
vBA = [V(6), V(7)]
vOFFK = [V(12 + i) for i in range(4)]
vOFFV = [V(16 + i) for i in range(2)]
vKB = [V(18 + s) for s in range(4)]
vVB = [V(22 + d) for d in range(8)]
vOFFWO = [V(30), V(31)]
TR = 32
RAW = 64
NB = 6
NEGM = 32
ONES = V(44, 4)
vKA = [V(48 + s) for s in range(4)]
vVA = [V(52 + d) for d in range(8)]
vTMP = [V(60 + i) for i in range(4)]
SB = [64, 112]
QF = 160
PF = 224
vT = [V(248 + i) for i in range(8)]
ACC = 0
XB = 96
OACC = 0
LACC = 96
KF = 128
VF = 192


def acc(t, mt):
    return A(ACC + (t * 3 + mt) * 4, 4)


def tr(t):
    return V(TR + t * 4, 4)


def raw(buf, e):
    return V(RAW + buf * 32 + e * 4, 4)


def xf(ks, mt):
    return A(XB + ((ks % 3) * 3 + mt) * 4, 4)


def sreg(par, kt, qt):
    return V(SB[par] + (kt * 3 + qt) * 4, 4)


def qf(qt, s):
    return V(QF + (qt * 4 + s) * 4, 4)


def pf(ks, qt):
    return V(PF + (ks * 3 + qt) * 4, 4)


def negm(qt):
    return V(NEGM + qt * 4, 4)


def oacc(dt, qt):
    return A(OACC + (dt * 3 + qt) * 4, 4)


def lacc(qt):
    return A(LACC + qt * 4, 4)


def kf(kt, s):
    return A(KF + (kt * 4 + s) * 4, 4)


def vf(dt, ks):
    return A(VF + (dt * 2 + ks) * 4, 4)


def perms(buf, t):
    o = []
    for p in range(4):
        lo = V(RAW + buf * 32 + (2 * p) * 4 + t // 2)
        hi = V(RAW + buf * 32 + (2 * p + 1) * 4 + t // 2)
        o.append(valu('v_perm_b32', V(TR + t * 4 + p), hi, lo, sSELHI if t & 1 else sSELLO))
    return o


def dma_unit(kind, c, i):
    slot = (c % 5) * 32768 + (16384 if kind == 'V' else 0)
    voff = vOFFK[i] if kind == 'K' else vOFFV[i & 1]
    return [salu('s_add_u32', 'm0', sLDSW, slot),
            salu('s_add_u32', sT0, sKV, c * 16384),
            dma(voff, SRD_K if kind == 'K' else SRD_V, sT0, i * 1024, tag=f'{kind}{c}', flags=KVFLAGS)]


class DmaQ:
    def __init__(self):
        self.units = [(kind, c, i) for c in range(8) for kind in 'KV' for i in range(4)]
        self.pos = 0
        self.limit = 0

    def allow(self, n):
        self.limit = max(self.limit, n)

    def pop(self, n=1):
        o = []
        while n > 0 and self.pos < min(self.limit, len(self.units)):
            o += dma_unit(*self.units[self.pos])
            self.pos += 1
            n -= 1
        return o

    def ensure(self, n):
        return self.pop(max(0, n - self.pos))


def sprinkle(stream, q, every, first=0):
    out = []
    k = -first
    for I in stream:
        out.append(I)
        if I.kind == 'mfma':
            k += 1
            if k > 0 and k % every == 0:
                out += q.pop(1)
    return out


def gemm_phase(L, is_q, bfrag, extra=None):
    def wloads(ks):
        o = []
        buf = (ks + (0 if is_q else 3)) % NB
        o.append(salu('s_add_u32', sKK, sB, ks))
        o.append(salu('s_and_b32', sKK, sKK, 15))
        o.append(salu('s_lshl_b32', sKK, sKK, 18 if is_q else 15))
        o.append(salu('s_add_u32', sWOFF, sWBASE, sKK))
        if is_q:
            for e in range(8):
                if e:
                    o.append(salu('s_add_u32', sWOFF, sWOFF, 8192))
                o.append(buf_load(raw(buf, e), vOFFWQ0, SRD_WQ, sWOFF, flags=WFLAGS))
        else:
            for e in range(8):
                o.append(buf_load(raw(buf, e), vOFFWO[e >> 2], SRD_WO, sWOFF, (e & 3) * 1024, flags=WFLAGS))
        return o

    def xloads(ks):
        return []

    return wloads, xloads


STAMP = int(os.environ.get('STAMP', '0'))
STREGS = [3, 4, 5, 6, 7, 8, 9, 10, 11, 12, 13, 14, 15, 42, 43, 68]


def build_main():
    L = []
    e = L.append
    ex = L.extend
    slow_paths = []
    nst = [0]

    def stamp():
        if not STAMP:
            return
        e(wait_all(vm=False, lgkm=True))
        e(Ins('s_memtime s[90:91]', 'smem', [], ['s90', 's91']))
        e(Ins('s_waitcnt lgkmcnt(0)', 'other'))
        e(salu('s_mov_b32', S(STREGS[nst[0]]), S(90)))
        nst[0] += 1

    e(Ins('s_cmp_ge_u32 s2, 256', 'salu', ['s2'], ['scc']))
    e(Ins('s_cbranch_scc1 L_exit', 'branch', ['scc']))
    e(Ins('s_load_dwordx16 s[16:31], s[0:1], 0', 'smem', [], regs(S(16, 16))))
    e(Ins('s_load_dwordx8 s[32:39], s[0:1], 64', 'smem', [], regs(S(32, 8))))
    e(Ins('s_load_dwordx2 s[40:41], s[0:1], 96', 'smem', [], regs(S(40, 2))))
    e(salu('s_and_b32', sH, S(2), 7))
    e(salu('s_lshr_b32', sT0, S(2), 3))
    e(salu('s_and_b32', sB, sT0, 15))
    e(salu('s_lshr_b32', sBLK, sT0, 4))
    e(valu('v_lshrrev_b32', vT[0], 6, V(0)))
    e(valu('v_readfirstlane_b32', sW, vT[0]))
    e(valu('v_and_b32', vJ, 15, V(0)))
    e(valu('v_bfe_u32', vG, V(0), 4, 2))
    e(salu('s_mov_b32', sSELLO, 0x05040100))
    e(salu('s_mov_b32', sSELHI, 0x07060302))
    e(salu('s_mov_b32', sC, CSCALE))
    e(salu('s_mov_b32', sTH, THRESH))
    e(valu('v_lshlrev_b32', vT[0], 4, vJ))
    e(valu('v_lshl_add_u32', vOFFWQ0, vG, 16, vT[0]))
    e(valu('v_add_u32', vBF, 4, vJ))
    e(valu('v_and_b32', vBF, 15, vBF))
    e(valu('v_lshlrev_b32', vBB, 10, vJ))
    e(valu('v_lshl_add_u32', vOFFWO[0], vG, 13, vT[0]))
    e(valu('v_add_u32', vOFFWO[1], 4096, vOFFWO[0]))
    for i in range(4):
        e(valu('v_add_u32', vT[1], 4 * i + 4, vG))
        e(valu('v_and_b32', vT[1], 15, vT[1]))
        e(valu('v_xor_b32', vT[1], vT[1], vJ))
        e(valu('v_lshlrev_b32', vT[1], 4, vT[1]))
        e(valu('v_lshl_add_u32', vOFFK[i], vG, 8, vT[1]))
    for i in range(2):
        e(valu('v_add_u32', vT[1], 4 * i, vG))
        e(valu('v_lshlrev_b32', vT[1], 1, vT[1]))
        e(valu('v_xor_b32', vT[1], vT[1], vJ))
        e(valu('v_lshlrev_b32', vT[1], 4, vT[1]))
        e(valu('v_lshl_add_u32', vOFFV[i], vG, 8, vT[1]))
    e(valu('v_add_u32', vT[2], 4, vJ))
    e(valu('v_and_b32', vT[2], 15, vT[2]))
    for s in range(4):
        e(valu('v_lshl_add_u32', vT[1], vG, 2, s))
        e(valu('v_xor_b32', vT[1], vT[1], vT[2]))
        e(valu('v_lshlrev_b32', vT[1], 4, vT[1]))
        e(valu('v_lshl_add_u32', vKB[s], vJ, 8, vT[1]))
    e(valu('v_lshrrev_b32', vT[3], 2, vJ))
    e(valu('v_lshl_add_u32', vT[4], vG, 2, vT[3]))
    e(valu('v_and_b32', vT[5], 7, vT[4]))
    e(valu('v_and_b32', vT[6], 3, vJ))
    e(valu('v_lshlrev_b32', vT[6], 3, vT[6]))
    e(valu('v_lshl_add_u32', vT[6], vT[4], 8, vT[6]))
    for dt in range(8):
        e(valu('v_xor_b32', vT[1], dt, vT[5]))
        e(valu('v_lshl_add_u32', vVB[dt], vT[1], 5, vT[6]))
    e(Ins('s_waitcnt lgkmcnt(0)', 'other'))
    e(Ins(f's_cmp_eq_u32 {fmt(sBLK)}, 0', 'salu', regs(sBLK), ['scc']))
    for srd, pa, size in ((SRD_X, 16, 786432), (SRD_K, 18, 16777216), (SRD_V, 20, 16777216),
                          (SRD_WQ, 22, 4194304), (SRD_WO, 24, 4194304)):
        e(Ins(f's_cselect_b64 s[{srd[1]}:{srd[1] + 1}], s[{pa}:{pa + 1}], s[{pa + 10}:{pa + 11}]', 'salu',
              ['scc'] + regs(S(pa, 2)) + regs(S(pa + 10, 2)), regs(S(srd[1], 2))))
        e(salu('s_mov_b32', S(srd[1] + 2), size))
        e(salu('s_mov_b32', S(srd[1] + 3), 0x20000))
    e(salu('s_mov_b64', S(SRD_WS[1], 2), S(40, 2)))
    e(salu('s_mov_b32', S(SRD_WS[1] + 2), 32 * 8 * 48 * 1024))
    e(salu('s_mov_b32', S(SRD_WS[1] + 3), 0x20000))
    e(salu('s_mul_i32', sX[0], sB, 49152))
    e(salu('s_add_u32', sX[1], sX[0], 16384))
    e(salu('s_add_u32', sX[2], sX[0], 32768))
    e(salu('s_lshl_b32', sT0, sH, 2))
    e(salu('s_add_u32', sT0, sT0, sW))
    e(salu('s_lshl_b32', sWBASE, sT0, 8))
    e(salu('s_lshl_b32', sLDSW, sW, 12))
    e(salu('s_lshl_b32', sT0, sB, 3))
    e(salu('s_add_u32', sT0, sT0, sH))
    e(salu('s_lshl_b32', sKV, sT0, 17))
    e(salu('s_add_u32', sKV, sKV, sLDSW))
    e(salu('s_lshl_b32', sT1, sBLK, 7))
    e(salu('s_add_u32', sT0, sT0, sT1))
    e(salu('s_mul_i32', sOUT, sT0, 48 * 1024))
    e(salu('s_mul_i32', sT1, sW, 12288))
    e(salu('s_add_u32', sOUT, sOUT, sT1))

    XREG = 112 * 1024
    vXA = V(8)
    vXS = V(9)
    Q = DmaQ()

    def bfrag_reads(region, ks):
        o = []
        if region == XREG:
            if ks >= 4 and ks % 4 == 0:
                o.append(wait_vm_tag(f'X{ks // 4}'))
                o.append(barrier())
            for mt in range(3):
                o.append(ds_read('ds_read_b128', xf(ks, mt), vXA, (ks * 3 + mt) * 1024))
            return o
        o.append(salu('s_add_u32', sKK, sB, ks))
        o.append(salu('s_and_b32', sT2, sKK, 3))
        o.append(salu('s_lshl_b32', sT2, sT2, 2))
        o.append(salu('s_bfe_u32', sKK, sKK, 0x20002))
        o.append(salu('s_lshl_b32', sKK, sKK, 8))
        o.append(salu('s_add_u32', sKK, sKK, region))
        ad = vBA[ks & 1]
        o.append(valu('v_add_u32', ad, sT2, vG))
        o.append(valu('v_xor_b32', ad, ad, vBF))
        o.append(valu('v_lshl_add_u32', ad, ad, 4, vBB))
        o.append(valu('v_add_u32', ad, sKK, ad))
        for mt in range(3):
            o.append(ds_read('ds_read_b128', xf(ks, mt), ad, mt * 16384))
        return o

    def gemm(is_q, region, extra, pre_issued=0, ramp=False):
        wloads, _ = gemm_phase(L, is_q, None)
        nxt = pre_issued
        if not ramp:
            while nxt < NB:
                ex(wloads(nxt))
                nxt += 1
        ex(bfrag_reads(region, 0))
        ex(bfrag_reads(region, 1))
        boff = 0 if is_q else 3
        for t in range(8):
            ex(perms(boff, t))
        ex(wloads(nxt))
        nxt += 1
        for ks in range(16):
            if STAMP == 2 and ks % 4 == 0:
                stamp()
            if ks + 2 < 16:
                ex(bfrag_reads(region, ks + 2))
            for t in range(8):
                for mt in range(3):
                    e(mfma(acc(t, mt), tr(t), xf(ks, mt), acc(t, mt) if ks else 0))
                if ks + 1 < 16:
                    ex(perms((ks + 1 + boff) % NB, t))
                if t == 3 and nxt < 16 and nxt < ks + NB:
                    ex(wloads(nxt))
                    nxt += 1
            if nxt < 16 and nxt <= ks + 1 + NB:
                ex(wloads(nxt))
                nxt += 1
            if extra and ks in extra:
                ex(extra[ks]())

    L.append(Ins('; ======== phase 1: Q projection', 'comment'))
    stamp()
    e(valu('v_and_b32', V(32), 63, V(0)))
    e(valu('v_lshrrev_b32', V(33), 2, V(32)))
    e(valu('v_and_b32', V(34), 3, V(32)))
    e(valu('v_lshlrev_b32', V(34), 4, V(34)))
    e(valu('v_lshl_add_u32', vXS, V(33), 10, V(34)))
    e(valu('v_lshlrev_b32', V(34), 4, vG))
    e(valu('v_lshl_add_u32', vXA, vJ, 6, V(34)))
    e(valu('v_add_u32', vXA, XREG, vXA))

    def xdma(n):
        o = []
        o.append(salu('s_add_u32', sT0, sW, 4 * n))
        o.append(salu('s_mul_i32', sT1, sT0, 43))
        o.append(salu('s_lshr_b32', sT1, sT1, 7))
        o.append(salu('s_mul_i32', sT2, sT1, 3))
        o.append(salu('s_sub_u32', sT2, sT0, sT2))
        o.append(salu('s_lshl_b32', sT0, sT0, 10))
        o.append(salu('s_add_u32', 'm0', sT0, XREG))
        o.append(salu('s_add_u32', sT1, sT1, sB))
        o.append(salu('s_and_b32', sT1, sT1, 15))
        o.append(salu('s_lshl_b32', sT1, sT1, 6))
        o.append(salu('s_lshl_b32', sT2, sT2, 14))
        o.append(salu('s_add_u32', sT1, sT1, sT2))
        o.append(salu('s_add_u32', sT1, sT1, sX[0]))
        o.append(dma(vXS, SRD_X, sT1, 0, tag=f'X{n // 3}'))
        return o
    wl1, _ = gemm_phase(L, True, None)
    for n in range(3):
        ex(xdma(n))
    ex(wl1(0))
    for n in range(3, 12):
        ex(xdma(n))
    ex(wl1(1))
    e(wait_vm_tag('X0'))
    e(barrier())
    if STAMP == 2:
        stamp()
    Q.allow(28)
    P1START = int(os.environ.get('P1START', '2'))
    P1PER = int(os.environ.get('P1PER', '1'))
    extra = {ks: (lambda: Q.pop(P1PER)) for ks in range(P1START, 16)}
    gemm(True, XREG, extra, pre_issued=2, ramp=True)

    stamp()
    L.append(Ins('; ======== Q fragments', 'comment'))
    n = 0
    for qt in range(3):
        for s in range(4):
            for p in range(4):
                a0 = V(208 + (n % 8) * 2)
                a1 = V(209 + (n % 8) * 2)
                n += 1
                e(valu('v_accvgpr_read_b32', a0, A(acc(2 * p, qt)[1] + s)))
                e(valu('v_accvgpr_read_b32', a1, A(acc(2 * p + 1, qt)[1] + s)))
                e(valu('v_mul_f32', a0, sC, a0))
                e(valu('v_mul_f32', a1, sC, a1))
                e(valu('v_cvt_pk_bf16_f32', V(qf(qt, s)[1] + p), a0, a1))
    for r in range(4):
        e(valu('v_mov_b32', V(ONES[1] + r), 0x3f803f80))
    for i in range(108):
        e(valu('v_accvgpr_write_b32', A(OACC + i), 0))

    def kaddr(c):
        return [valu('v_add_u32', vKA[s], (c % 5) * 32768, vKB[s]) for s in range(4)]

    def vaddr(c):
        return [valu('v_add_u32', vVA[d], (c % 5) * 32768 + 16384, vVB[d]) for d in range(8)]

    def kreads():
        return [ds_read('ds_read_b128', kf(kt, s), vKA[s], kt * 4096) for kt in range(4) for s in range(4)]

    def vreads():
        o = []
        for ks in range(2):
            for dt in range(8):
                for hf in range(2):
                    o.append(ds_read('ds_read_b64_tr_b16', A(vf(dt, ks)[1] + 2 * hf, 2), vVA[dt], ks * 8192 + hf * 4096))
        return o

    def qk_mfmas(par, first):
        o = []
        for kt in range(4):
            for s in range(4):
                for qt in range(3):
                    C = sreg(par, kt, qt) if s else (0 if first else negm(qt))
                    o.append(mfma(sreg(par, kt, qt), kf(kt, s), qf(qt, s), C))
        return o

    def exp_ops(par):
        o = []
        for kt in range(4):
            for qt in range(3):
                b = sreg(par, kt, qt)[1]
                for r in range(4):
                    o.append(valu('v_exp_f32', V(b + r), V(b + r)))
                pb = pf(kt // 2, qt)[1] + (kt & 1) * 2
                o.append(valu('v_cvt_pk_bf16_f32', V(pb), V(b), V(b + 1)))
                o.append(valu('v_cvt_pk_bf16_f32', V(pb + 1), V(b + 2), V(b + 3)))
        return o

    def pv_mfmas():
        o = []
        for ks in range(2):
            for dt in range(8):
                for qt in range(3):
                    o.append(mfma(oacc(dt, qt), vf(dt, ks), pf(ks, qt), oacc(dt, qt)))
            for qt in range(3):
                o.append(mfma(lacc(qt), ONES, pf(ks, qt), lacc(qt)))
        return o

    def max_all(par):
        o = []
        b = SB[par]
        o.append(valu('v_max3_f32', vTMP[0], V(b), V(b + 1), V(b + 2)))
        for i in range(3, 47, 2):
            o.append(valu('v_max3_f32', vTMP[0], vTMP[0], V(b + i), V(b + i + 1)))
        o.append(valu('v_max_f32', vTMP[0], vTMP[0], V(b + 47)))
        return o

    def rebase(par, first):
        o = []
        o.append(valu('v_and_b32', vT[6], 63, V(0)))
        o.append(valu('v_xor_b32', vT[4], 16, vT[6]))
        o.append(valu('v_lshlrev_b32', vT[4], 2, vT[4]))
        o.append(valu('v_xor_b32', vT[5], 32, vT[6]))
        o.append(valu('v_lshlrev_b32', vT[5], 2, vT[5]))
        for qt in range(3):
            m = vT[qt]
            vals = [V(sreg(par, kt, qt)[1] + r) for kt in range(4) for r in range(4)]
            o.append(valu('v_max3_f32', m, vals[0], vals[1], vals[2]))
            for i in range(3, 15, 2):
                o.append(valu('v_max3_f32', m, m, vals[i], vals[i + 1]))
            o.append(valu('v_max_f32', m, m, vals[15]))
            o.append(ds_bperm(vT[7], vT[4], m))
            o.append(valu('v_max_f32', m, m, vT[7]))
            o.append(ds_bperm(vT[7], vT[5], m))
            o.append(valu('v_max_f32', m, m, vT[7]))
            if not first:
                o.append(valu('v_max_f32', m, 0, m))
            for v in vals:
                o.append(valu('v_sub_f32', v, v, m))
            if first:
                for r in range(4):
                    o.append(valu('v_sub_f32', V(negm(qt)[1] + r), 0, m))
            else:
                for r in range(4):
                    o.append(valu('v_sub_f32', V(negm(qt)[1] + r), V(negm(qt)[1] + r), m))
                o.append(valu('v_sub_f32', vT[7], 0, m))
                o.append(valu('v_exp_f32', vT[7], vT[7]))
                accs = [A(oacc(dt, qt)[1] + r) for dt in range(8) for r in range(4)] + [A(lacc(qt)[1] + r) for r in range(4)]
                for a_ in accs:
                    o.append(valu('v_accvgpr_read_b32', vT[6], a_))
                    o.append(valu('v_mul_f32', vT[6], vT[6], vT[7]))
                    o.append(valu('v_accvgpr_write_b32', a_, vT[6]))
        return o

    L.append(Ins('; ======== attention prologue', 'comment'))
    ex(kaddr(0))
    ex(Q.ensure(4))
    e(wait_vm_tag('K0'))
    e(wait_all(vm=False, lgkm=True))
    e(barrier())
    Q.allow(40)
    EV = int(os.environ.get('EV', '11'))
    ex(kreads())
    ex(sprinkle(qk_mfmas(0, True), Q, 8))
    ex(rebase(0, True))

    wl4 = None
    for c in range(8):
        par = c & 1
        if STAMP == 1 or c == 0:
            stamp()
        L.append(Ins(f'; ======== attention chunk {c}', 'comment'))
        ex(Q.ensure(min(64, 8 * c + 12)))
        if c < 7:
            ex(kaddr(c + 1))
            e(wait_vm_tag(f'K{c + 1}'))
        ex(vaddr(c))
        e(wait_vm_tag(f'V{c}'))
        e(wait_all(vm=False, lgkm=True))
        e(barrier())
        Q.allow(8 * (c + 5))
        body0 = len(L)
        pv = pv_mfmas()
        eo = exp_ops(par)
        vr = vreads()
        if c < 7:
            kr = kreads()
            qk = qk_mfmas(par ^ 1, False)
            mx = max_all(par ^ 1)
            ex(kr[:6])
            ex(interleave(qk[:24], kr[6:] + interleave(eo[:36], vr[:16])))
            ex(interleave(pv[:27], interleave(eo[36:], vr[16:])))
            ex(interleave(qk[24:], mx[:11], start=4))
        else:
            ex(interleave(eo[:36], vr[:16]))
            ex(interleave(pv[:27], interleave(eo[36:], vr[16:])))
        if c == 6:
            e(salu('s_lshl_b32', sT0, sH, 19))
            e(salu('s_lshl_b32', sT1, sW, 8))
            e(salu('s_add_u32', sWBASE, sT0, sT1))
            wl4, _ = gemm_phase(L, False, None)
            ex(wl4(0))
            ex(wl4(1))
        if c < 7:
            ex(interleave(pv[27:], mx[11:], start=6))
            L[body0:] = sprinkle(L[body0:], Q, EV)
            e(Ins(f"v_cmp_lt_f32 vcc, {fmt(sTH)}, {fmt(vTMP[0])}", 'valu', regs(vTMP[0]) + regs(sTH), ['vcc'], {'op': 'v_cmp'}))
            e(nop(3))
            e(Ins(f's_cbranch_vccnz L_slow{c}', 'branch', ['vcc']))
            e(Ins(f'L_back{c}:', 'label'))
            sp = rebase(par ^ 1, False)
            sp.append(nop(7))
            sp.append(nop(7))
            sp.append(Ins(f's_branch L_back{c}', 'branch'))
            slow_paths.append((f'L_slow{c}', sp))
        else:
            ex(pv[27:])

    stamp()
    L.append(Ins('; ======== O normalise -> LDS', 'comment'))
    ex(wl4(2))
    ex(wl4(3))
    ex(wl4(4))
    nT = [V(32 + i) for i in range(8)]
    e(valu('v_lshrrev_b32', nT[3], 1, vG))
    e(valu('v_and_b32', nT[4], 1, vG))
    e(valu('v_lshlrev_b32', nT[4], 3, nT[4]))
    e(valu('v_add_u32', nT[4], nT[4], vBB))
    e(salu('s_lshl_b32', sT0, sW, 8))
    e(valu('v_add_u32', nT[4], sT0, nT[4]))
    OW = [V(48 + d) for d in range(8)]
    for dt in range(8):
        e(valu('v_add_u32', nT[5], 2 * dt, nT[3]))
        e(valu('v_xor_b32', nT[5], nT[5], vBF))
        e(valu('v_lshl_add_u32', OW[dt], nT[5], 4, nT[4]))
    for qt in range(3):
        e(valu('v_accvgpr_read_b32', nT[6], A(lacc(qt)[1])))
        e(valu('v_rcp_f32', nT[6], nT[6]))
        for dt in range(8):
            b = 128 + ((qt * 8 + dt) % 5) * 6
            for r in range(4):
                e(valu('v_accvgpr_read_b32', V(b + r), A(oacc(dt, qt)[1] + r)))
                e(valu('v_mul_f32', V(b + r), V(b + r), nT[6]))
            e(valu('v_cvt_pk_bf16_f32', V(b + 4), V(b), V(b + 1)))
            e(valu('v_cvt_pk_bf16_f32', V(b + 5), V(b + 2), V(b + 3)))
            e(ds_write('ds_write_b64', OW[dt], V(b + 4, 2), qt * 16384))
    e(wait_all(vm=False, lgkm=True))
    e(barrier())
    stamp()
    L.append(Ins('; ======== phase 4: output projection', 'comment'))
    gemm(False, 0, None, pre_issued=5)

    stamp()
    L.append(Ins('; ======== store partials', 'comment'))
    e(valu('v_and_b32', vBA[0], 63, V(0)))
    e(valu('v_lshlrev_b32', vBA[0], 4, vBA[0]))
    for mt in range(3):
        for r in range(4):
            i = mt * 4 + r
            b = 64 + (i % 4) * 12
            for t in range(8):
                e(valu('v_accvgpr_read_b32', V(b + t), A(acc(t, mt)[1] + r)))
            for p in range(4):
                e(valu('v_cvt_pk_bf16_f32', V(b + 8 + p), V(b + 2 * p), V(b + 2 * p + 1)))
            if i and i % 4 == 0:
                e(salu('s_add_u32', sOUT, sOUT, 4096))
            e(buf_store(V(b + 8, 4), vBA[0], SRD_WS, sOUT, (i % 4) * 1024))
    if STAMP:
        e(wait_all())
        stamp()
        e(salu('s_mov_b32', S(SRD_WS[1] + 2), 0x10000000))
        e(salu('s_lshl_b32', sT0, S(2), 2))
        e(salu('s_add_u32', sT0, sT0, sW))
        e(salu('s_lshl_b32', sT0, sT0, 7))
        e(salu('s_add_u32', sT0, sT0, 64 << 20))
        e(valu('v_mov_b32', V(1), 0))
        e(valu('v_mov_b32', V(3), 0))
        for i in range(nst[0]):
            e(valu('v_mov_b32', V(2), S(STREGS[i])))
            e(buf_store(V(2, 2), V(1), SRD_WS, sT0, i * 8))
            e(wait_all())
    e(Ins('L_exit:', 'label'))
    e(Ins('s_endpgm', 'other'))
    lines, stats = finalize(L)
    print('main', stats, len(lines), file=sys.stderr)
    for name, sp in slow_paths:
        lines.append(name + ':')
        l2, _ = finalize(sp, entry_pad=True)
        lines += l2
    return lines


def build_reduce():
    L = []
    e = L.append
    e(Ins('s_cmp_ge_u32 s2, 384', 'salu', ['s2'], ['scc']))
    e(Ins('s_cbranch_scc1 R_exit', 'branch', ['scc']))
    e(Ins('s_load_dwordx2 s[4:5], s[0:1], 80', 'smem', [], regs(S(4, 2))))
    e(Ins('s_load_dwordx2 s[6:7], s[0:1], 96', 'smem', [], regs(S(6, 2))))
    e(salu('s_mul_i32', S(20), S(2), 5462))
    e(salu('s_lshr_b32', S(20), S(20), 16))
    e(salu('s_mul_i32', S(21), S(20), 12))
    e(salu('s_sub_u32', S(21), S(2), S(21)))
    e(salu('s_mul_i32', S(26), S(21), 11))
    e(salu('s_lshr_b32', S(26), S(26), 5))
    e(salu('s_mul_i32', S(27), S(26), 3))
    e(salu('s_sub_u32', S(27), S(21), S(27)))
    e(valu('v_lshlrev_b32', V(3), 4, V(0)))
    e(salu('s_mul_i32', S(23), S(20), 8 * 49152))
    e(salu('s_mul_i32', S(28), S(26), 12288))
    e(salu('s_add_u32', S(23), S(23), S(28)))
    e(salu('s_lshl_b32', S(28), S(27), 12))
    e(salu('s_add_u32', S(23), S(23), S(28)))
    e(valu('v_and_b32', V(1), 15, V(0)))
    e(valu('v_bfe_u32', V(2), V(0), 4, 2))
    e(valu('v_lshlrev_b32', V(2), 6, V(2)))
    e(valu('v_lshl_add_u32', V(4), V(1), 11, V(2)))
    e(valu('v_lshrrev_b32', V(2), 6, V(0)))
    e(valu('v_lshl_add_u32', V(4), V(2), 4, V(4)))
    e(salu('s_and_b32', S(24), S(20), 15))
    e(salu('s_mul_i32', S(24), S(24), 48 * 2048))
    e(salu('s_lshr_b32', S(25), S(20), 4))
    e(salu('s_lshl_b32', S(25), S(25), 10))
    e(salu('s_add_u32', S(24), S(24), S(25)))
    e(salu('s_lshl_b32', S(25), S(27), 15))
    e(salu('s_add_u32', S(24), S(24), S(25)))
    e(salu('s_lshl_b32', S(25), S(26), 8))
    e(salu('s_add_u32', S(24), S(24), S(25)))
    e(Ins('s_waitcnt lgkmcnt(0)', 'other'))
    e(salu('s_mov_b64', S(8, 2), S(4, 2)))
    e(salu('s_mov_b32', S(10), 16 * 48 * 1024 * 2))
    e(salu('s_mov_b32', S(11), 0x20000))
    e(salu('s_mov_b64', S(12, 2), S(6, 2)))
    e(salu('s_mov_b32', S(14), 32 * 8 * 48 * 1024))
    e(salu('s_mov_b32', S(15), 0x20000))
    B0 = 8
    for hh in range(8):
        if hh:
            e(salu('s_add_u32', S(23), S(23), 49152))
        e(buf_load(V(B0 + hh * 4, 4), V(3), S(12, 4), S(23)))
    AC = B0 + 32
    e(salu('s_mov_b32', S(30), 0xffff0000))
    for hh in range(8):
        for i in range(4):
            src = V(B0 + hh * 4 + i)
            lo, hi = V(AC + 2 * i), V(AC + 2 * i + 1)
            if hh == 0:
                e(valu('v_lshlrev_b32', lo, 16, src))
                e(valu('v_and_b32', hi, S(30), src))
            else:
                t0, t1 = V(AC + 8 + (i & 1) * 2), V(AC + 9 + (i & 1) * 2)
                e(valu('v_lshlrev_b32', t0, 16, src))
                e(valu('v_and_b32', t1, S(30), src))
                e(valu('v_add_f32', lo, lo, t0))
                e(valu('v_add_f32', hi, hi, t1))
    for p in range(4):
        e(valu('v_cvt_pk_bf16_f32', V(B0 + p), V(AC + 2 * p), V(AC + 2 * p + 1)))
    e(buf_store(V(B0, 4), V(4), S(8, 4), S(24)))
    e(Ins('R_exit:', 'label'))
    e(Ins('s_endpgm', 'other'))
    lines, stats = finalize(L)
    return lines


def kd(name, vgpr, accum, sgpr):
    return f""".amdhsa_kernel {name}
  .amdhsa_next_free_vgpr {vgpr}
  .amdhsa_next_free_sgpr {sgpr}
  .amdhsa_accum_offset {accum}
  .amdhsa_group_segment_fixed_size 0
  .amdhsa_kernarg_size 104
  .amdhsa_user_sgpr_count 2
  .amdhsa_user_sgpr_kernarg_segment_ptr 1
  .amdhsa_system_sgpr_workgroup_id_x 1
.end_amdhsa_kernel
"""


for wg in range(384 + 16):
    assert (wg * 5462) >> 16 == wg // 12
for i in range(48):
    assert (i * 43) >> 7 == i // 3
for rq in range(12):
    assert (rq * 11) >> 5 == rq // 3

main = build_main()
red = build_reduce()
txt = HDR
txt += f'; @launch kernel={NAME}_kernel grid=(256,1,1) block=(256,1,1) lds=163840\n'
txt += '; @launch kernel=reduce_kernel grid=(384,1,1) block=(256,1,1) lds=0\n'
txt += '.amdgcn_target "amdgcn-amd-amdhsa--gfx950"\n.text\n'
txt += f'.globl {NAME}_kernel\n.p2align 8\n.type {NAME}_kernel,@function\n{NAME}_kernel:\n'
txt += '\n'.join(main) + '\n'
txt += '.globl reduce_kernel\n.p2align 8\n.type reduce_kernel,@function\nreduce_kernel:\n'
txt += '\n'.join(red) + '\n'
txt += '.section .rodata,"a"\n.p2align 6\n'
txt += kd(f'{NAME}_kernel', 512, 256, 96)
txt += '.p2align 6\n'
txt += kd('reduce_kernel', 56, 56, 32)
open(OUT, 'w').write(txt)
print('wrote', OUT, len(txt), file=sys.stderr)
```

```python
import sys
import struct
from asmlib import *
import os
KVFLAGS = os.environ.get('KVFLAGS', 'nt')
WFLAGS = os.environ.get('WFLAGS', '')

NAME = 'concat_heads__gqa_block_cached__gqa_block_cached__near_ridge'
OUT = sys.argv[1] if len(sys.argv) > 1 else f'cdna_kernels/{NAME}.s'

HDR = open(f'cdna_kernels/{NAME}.s.ref').read().split('; Override launch')[0]


def f32bits(x):
    return struct.unpack('<I', struct.pack('<f', x))[0]


CSCALE = f32bits(1.4426950408889634 / (128.0 ** 0.5))
THRESH = f32bits(16.0)

sPTR = 16
SRD_X, SRD_K, SRD_V, SRD_WQ, SRD_WO, SRD_WS = S(44, 4), S(48, 4), S(52, 4), S(56, 4), S(60, 4), S(64, 4)
sH, sB, sBLK, sW = S(70), S(71), S(72), S(73)
sX = [S(74), S(75), S(76)]
sWOFF = S(77)
sKV = S(78)
sT0, sT1 = S(79), S(80)
sSELLO, sSELHI = S(82), S(83)
sLDSW = S(84)
sOUT = S(85)
sC = S(86)
sTH = S(87)
sWBASE = S(88)
sKK = S(89)
sT2 = S(92)

vJ, vG = V(1), V(2)
vOFFWQ0 = V(3)
vBF = V(4)
vBB = V(5)
vBA = [V(6), V(7)]
vOFFK = [V(12 + i) for i in range(4)]
vOFFV = [V(16 + i) for i in range(2)]
vKB = [V(18 + s) for s in range(4)]
vVB = [V(22 + d) for d in range(8)]
vOFFWO = [V(30), V(31)]
TR = 32
RAW = 64
NB = 6
NEGM = 32
ONES = V(44, 4)
vKA = [V(48 + s) for s in range(4)]
vVA = [V(52 + d) for d in range(8)]
vTMP = [V(60 + i) for i in range(4)]
SB = [64, 112]
QF = 160
PF = 224
vT = [V(248 + i) for i in range(8)]
ACC = 0
XB = 96
OACC = 0
LACC = 96
KF = 128
VF = 192


def acc(t, mt):
    return A(ACC + (t * 3 + mt) * 4, 4)


def tr(t):
    return V(TR + t * 4, 4)


def raw(buf, e):
    return V(RAW + buf * 32 + e * 4, 4)


def xf(ks, mt):
    return A(XB + ((ks % 3) * 3 + mt) * 4, 4)


def sreg(par, kt, qt):
    return V(SB[par] + (kt * 3 + qt) * 4, 4)


def qf(qt, s):
    return V(QF + (qt * 4 + s) * 4, 4)


def pf(ks, qt):
    return V(PF + (ks * 3 + qt) * 4, 4)


def negm(qt):
    return V(NEGM + qt * 4, 4)


def oacc(dt, qt):
    return A(OACC + (dt * 3 + qt) * 4, 4)


def lacc(qt):
    return A(LACC + qt * 4, 4)


def kf(kt, s):
    return A(KF + (kt * 4 + s) * 4, 4)


def vf(dt, ks):
    return A(VF + (dt * 2 + ks) * 4, 4)


def perms(buf, t):
    o = []
    for p in range(4):
        lo = V(RAW + buf * 32 + (2 * p) * 4 + t // 2)
        hi = V(RAW + buf * 32 + (2 * p + 1) * 4 + t // 2)
        o.append(valu('v_perm_b32', V(TR + t * 4 + p), hi, lo, sSELHI if t & 1 else sSELLO))
    return o


def dma_unit(kind, c, i):
    slot = (c % 5) * 32768 + (16384 if kind == 'V' else 0)
    voff = vOFFK[i] if kind == 'K' else vOFFV[i & 1]
    return [salu('s_add_u32', 'm0', sLDSW, slot),
            salu('s_add_u32', sT0, sKV, c * 16384),
            dma(voff, SRD_K if kind == 'K' else SRD_V, sT0, i * 1024, tag=f'{kind}{c}', flags=KVFLAGS)]


class DmaQ:
    def __init__(self):
        self.units = [(kind, c, i) for c in range(8) for kind in 'KV' for i in range(4)]
        self.pos = 0
        self.limit = 0

    def allow(self, n):
        self.limit = max(self.limit, n)

    def pop(self, n=1):
        o = []
        while n > 0 and self.pos < min(self.limit, len(self.units)):
            o += dma_unit(*self.units[self.pos])
            self.pos += 1
            n -= 1
        return o

    def ensure(self, n):
        return self.pop(max(0, n - self.pos))


def sprinkle(stream, q, every, first=0):
    out = []
    k = -first
    for I in stream:
        out.append(I)
        if I.kind == 'mfma':
            k += 1
            if k > 0 and k % every == 0:
                out += q.pop(1)
    return out


def gemm_phase(L, is_q, bfrag, extra=None):
    def wloads(ks):
        o = []
        buf = (ks + (0 if is_q else 3)) % NB
        o.append(salu('s_add_u32', sKK, sB, ks))
        o.append(salu('s_and_b32', sKK, sKK, 15))
        o.append(salu('s_lshl_b32', sKK, sKK, 18 if is_q else 15))
        o.append(salu('s_add_u32', sWOFF, sWBASE, sKK))
        if is_q:
            for e in range(8):
                if e:
                    o.append(salu('s_add_u32', sWOFF, sWOFF, 8192))
                o.append(buf_load(raw(buf, e), vOFFWQ0, SRD_WQ, sWOFF, flags=WFLAGS))
        else:
            for e in range(8):
                o.append(buf_load(raw(buf, e), vOFFWO[e >> 2], SRD_WO, sWOFF, (e & 3) * 1024, flags=WFLAGS))
        return o

    def xloads(ks):
        return []

    return wloads, xloads


QBASE = 16 << 20
WSSIZE = QBASE + 32 * 32 * 12288
STAMP = int(os.environ.get('STAMP', '0'))
STREGS = [3, 4, 5, 6, 7, 8, 9, 10, 11, 12, 13, 14, 15, 42, 43, 68]


def build_main():
    L = []
    e = L.append
    ex = L.extend
    slow_paths = []
    nst = [0]

    def stamp():
        if not STAMP:
            return
        e(wait_all(vm=False, lgkm=True))
        e(Ins('s_memtime s[90:91]', 'smem', [], ['s90', 's91']))
        e(Ins('s_waitcnt lgkmcnt(0)', 'other'))
        e(salu('s_mov_b32', S(STREGS[nst[0]]), S(90)))
        nst[0] += 1

    e(Ins('s_cmp_ge_u32 s2, 256', 'salu', ['s2'], ['scc']))
    e(Ins('s_cbranch_scc1 L_exit', 'branch', ['scc']))
    e(Ins('s_load_dwordx16 s[16:31], s[0:1], 0', 'smem', [], regs(S(16, 16))))
    e(Ins('s_load_dwordx8 s[32:39], s[0:1], 64', 'smem', [], regs(S(32, 8))))
    e(Ins('s_load_dwordx2 s[40:41], s[0:1], 96', 'smem', [], regs(S(40, 2))))
    e(salu('s_and_b32', sH, S(2), 7))
    e(salu('s_lshr_b32', sT0, S(2), 3))
    e(salu('s_and_b32', sB, sT0, 15))
    e(salu('s_lshr_b32', sBLK, sT0, 4))
    e(valu('v_lshrrev_b32', vT[0], 6, V(0)))
    e(valu('v_readfirstlane_b32', sW, vT[0]))
    e(valu('v_and_b32', vJ, 15, V(0)))
    e(valu('v_bfe_u32', vG, V(0), 4, 2))
    e(salu('s_mov_b32', sSELLO, 0x05040100))
    e(salu('s_mov_b32', sSELHI, 0x07060302))
    e(salu('s_mov_b32', sC, CSCALE))
    e(salu('s_mov_b32', sTH, THRESH))
    e(valu('v_lshlrev_b32', vT[0], 4, vJ))
    e(valu('v_lshl_add_u32', vOFFWQ0, vG, 16, vT[0]))
    e(valu('v_add_u32', vBF, 4, vJ))
    e(valu('v_and_b32', vBF, 15, vBF))
    e(valu('v_lshlrev_b32', vBB, 10, vJ))
    e(valu('v_lshl_add_u32', vOFFWO[0], vG, 13, vT[0]))
    e(valu('v_add_u32', vOFFWO[1], 4096, vOFFWO[0]))
    for i in range(4):
        e(valu('v_add_u32', vT[1], 4 * i + 4, vG))
        e(valu('v_and_b32', vT[1], 15, vT[1]))
        e(valu('v_xor_b32', vT[1], vT[1], vJ))
        e(valu('v_lshlrev_b32', vT[1], 4, vT[1]))
        e(valu('v_lshl_add_u32', vOFFK[i], vG, 8, vT[1]))
    for i in range(2):
        e(valu('v_add_u32', vT[1], 4 * i, vG))
        e(valu('v_lshlrev_b32', vT[1], 1, vT[1]))
        e(valu('v_xor_b32', vT[1], vT[1], vJ))
        e(valu('v_lshlrev_b32', vT[1], 4, vT[1]))
        e(valu('v_lshl_add_u32', vOFFV[i], vG, 8, vT[1]))
    e(valu('v_add_u32', vT[2], 4, vJ))
    e(valu('v_and_b32', vT[2], 15, vT[2]))
    for s in range(4):
        e(valu('v_lshl_add_u32', vT[1], vG, 2, s))
        e(valu('v_xor_b32', vT[1], vT[1], vT[2]))
        e(valu('v_lshlrev_b32', vT[1], 4, vT[1]))
        e(valu('v_lshl_add_u32', vKB[s], vJ, 8, vT[1]))
    e(valu('v_lshrrev_b32', vT[3], 2, vJ))
    e(valu('v_lshl_add_u32', vT[4], vG, 2, vT[3]))
    e(valu('v_and_b32', vT[5], 7, vT[4]))
    e(valu('v_and_b32', vT[6], 3, vJ))
    e(valu('v_lshlrev_b32', vT[6], 3, vT[6]))
    e(valu('v_lshl_add_u32', vT[6], vT[4], 8, vT[6]))
    for dt in range(8):
        e(valu('v_xor_b32', vT[1], dt, vT[5]))
        e(valu('v_lshl_add_u32', vVB[dt], vT[1], 5, vT[6]))
    e(Ins('s_waitcnt lgkmcnt(0)', 'other'))
    e(Ins(f's_cmp_eq_u32 {fmt(sBLK)}, 0', 'salu', regs(sBLK), ['scc']))
    for srd, pa, size in ((SRD_X, 16, 786432), (SRD_K, 18, 16777216), (SRD_V, 20, 16777216),
                          (SRD_WQ, 22, 4194304), (SRD_WO, 24, 4194304)):
        e(Ins(f's_cselect_b64 s[{srd[1]}:{srd[1] + 1}], s[{pa}:{pa + 1}], s[{pa + 10}:{pa + 11}]', 'salu',
              ['scc'] + regs(S(pa, 2)) + regs(S(pa + 10, 2)), regs(S(srd[1], 2))))
        e(salu('s_mov_b32', S(srd[1] + 2), size))
        e(salu('s_mov_b32', S(srd[1] + 3), 0x20000))
    e(salu('s_mov_b64', S(SRD_WS[1], 2), S(40, 2)))
    e(salu('s_mov_b32', S(SRD_WS[1] + 2), WSSIZE))
    e(salu('s_mov_b32', S(SRD_WS[1] + 3), 0x20000))
    e(salu('s_mul_i32', sX[0], sB, 49152))
    e(salu('s_add_u32', sX[1], sX[0], 16384))
    e(salu('s_add_u32', sX[2], sX[0], 32768))
    e(salu('s_lshl_b32', sT0, sH, 2))
    e(salu('s_add_u32', sT0, sT0, sW))
    e(salu('s_lshl_b32', sWBASE, sT0, 8))
    e(salu('s_lshl_b32', sLDSW, sW, 12))
    e(salu('s_lshl_b32', sT0, sB, 3))
    e(salu('s_add_u32', sT0, sT0, sH))
    e(salu('s_lshl_b32', sKV, sT0, 17))
    e(salu('s_add_u32', sKV, sKV, sLDSW))
    e(salu('s_lshl_b32', sT1, sBLK, 7))
    e(salu('s_add_u32', sT0, sT0, sT1))
    e(salu('s_mul_i32', sOUT, sT0, 48 * 1024))
    e(salu('s_mul_i32', sT1, sW, 12288))
    e(salu('s_add_u32', sOUT, sOUT, sT1))

    XREG = 112 * 1024
    vXA = V(8)
    vXS = V(9)
    Q = DmaQ()

    def bfrag_reads(region, ks):
        o = []
        if region == XREG:
            if ks >= 4 and ks % 4 == 0:
                o.append(wait_vm_tag(f'X{ks // 4}'))
                o.append(barrier())
            for mt in range(3):
                o.append(ds_read('ds_read_b128', xf(ks, mt), vXA, (ks * 3 + mt) * 1024))
            return o
        o.append(salu('s_add_u32', sKK, sB, ks))
        o.append(salu('s_and_b32', sT2, sKK, 3))
        o.append(salu('s_lshl_b32', sT2, sT2, 2))
        o.append(salu('s_bfe_u32', sKK, sKK, 0x20002))
        o.append(salu('s_lshl_b32', sKK, sKK, 8))
        o.append(salu('s_add_u32', sKK, sKK, region))
        ad = vBA[ks & 1]
        o.append(valu('v_add_u32', ad, sT2, vG))
        o.append(valu('v_xor_b32', ad, ad, vBF))
        o.append(valu('v_lshl_add_u32', ad, ad, 4, vBB))
        o.append(valu('v_add_u32', ad, sKK, ad))
        for mt in range(3):
            o.append(ds_read('ds_read_b128', xf(ks, mt), ad, mt * 16384))
        return o

    def gemm(is_q, region, extra, pre_issued=0, ramp=False):
        wloads, _ = gemm_phase(L, is_q, None)
        nxt = pre_issued
        if not ramp:
            while nxt < NB:
                ex(wloads(nxt))
                nxt += 1
        ex(bfrag_reads(region, 0))
        ex(bfrag_reads(region, 1))
        boff = 0 if is_q else 3
        for t in range(8):
            ex(perms(boff, t))
        ex(wloads(nxt))
        nxt += 1
        for ks in range(16):
            if STAMP == 2 and ks % 4 == 0:
                stamp()
            if ks + 2 < 16:
                ex(bfrag_reads(region, ks + 2))
            for t in range(8):
                for mt in range(3):
                    e(mfma(acc(t, mt), tr(t), xf(ks, mt), acc(t, mt) if ks else 0))
                if ks + 1 < 16:
                    ex(perms((ks + 1 + boff) % NB, t))
                if t == 3 and nxt < 16 and nxt < ks + NB:
                    ex(wloads(nxt))
                    nxt += 1
            if nxt < 16 and nxt <= ks + 1 + NB:
                ex(wloads(nxt))
                nxt += 1
            if extra and ks in extra:
                ex(extra[ks]())

    L.append(Ins('; ======== load Q fragments', 'comment'))
    stamp()
    Q.allow(40)
    ex(Q.pop(4))
    e(salu('s_lshl_b32', sT0, sBLK, 4))
    e(salu('s_add_u32', sT0, sT0, sB))
    e(salu('s_lshl_b32', sT0, sT0, 3))
    e(salu('s_add_u32', sT0, sT0, sH))
    e(salu('s_lshl_b32', sT0, sT0, 2))
    e(salu('s_add_u32', sT0, sT0, sW))
    e(salu('s_mul_i32', sT1, sT0, 12288))
    e(salu('s_add_u32', sT1, sT1, QBASE))
    e(valu('v_and_b32', V(208), 63, V(0)))
    e(valu('v_lshlrev_b32', V(208), 4, V(208)))
    for f in range(12):
        if f and f % 4 == 0:
            e(salu('s_add_u32', sT1, sT1, 4096))
        e(buf_load(qf(f // 4, f % 4), V(208), SRD_WS, sT1, (f % 4) * 1024))
    ex(Q.pop(8))
    for r in range(4):
        e(valu('v_mov_b32', V(ONES[1] + r), 0x3f803f80))
    for i in range(108):
        e(valu('v_accvgpr_write_b32', A(OACC + i), 0))

    def kaddr(c):
        return [valu('v_add_u32', vKA[s], (c % 5) * 32768, vKB[s]) for s in range(4)]

    def vaddr(c):
        return [valu('v_add_u32', vVA[d], (c % 5) * 32768 + 16384, vVB[d]) for d in range(8)]

    def kreads():
        return [ds_read('ds_read_b128', kf(kt, s), vKA[s], kt * 4096) for kt in range(4) for s in range(4)]

    def vreads():
        o = []
        for ks in range(2):
            for dt in range(8):
                for hf in range(2):
                    o.append(ds_read('ds_read_b64_tr_b16', A(vf(dt, ks)[1] + 2 * hf, 2), vVA[dt], ks * 8192 + hf * 4096))
        return o

    def qk_mfmas(par, first):
        o = []
        for kt in range(4):
            for s in range(4):
                for qt in range(3):
                    C = sreg(par, kt, qt) if s else (0 if first else negm(qt))
                    o.append(mfma(sreg(par, kt, qt), kf(kt, s), qf(qt, s), C))
        return o

    def exp_ops(par):
        o = []
        for kt in range(4):
            for qt in range(3):
                b = sreg(par, kt, qt)[1]
                for r in range(4):
                    o.append(valu('v_exp_f32', V(b + r), V(b + r)))
                pb = pf(kt // 2, qt)[1] + (kt & 1) * 2
                o.append(valu('v_cvt_pk_bf16_f32', V(pb), V(b), V(b + 1)))
                o.append(valu('v_cvt_pk_bf16_f32', V(pb + 1), V(b + 2), V(b + 3)))
        return o

    def pv_mfmas():
        o = []
        for ks in range(2):
            for dt in range(8):
                for qt in range(3):
                    o.append(mfma(oacc(dt, qt), vf(dt, ks), pf(ks, qt), oacc(dt, qt)))
            for qt in range(3):
                o.append(mfma(lacc(qt), ONES, pf(ks, qt), lacc(qt)))
        return o

    def max_all(par):
        o = []
        b = SB[par]
        o.append(valu('v_max3_f32', vTMP[0], V(b), V(b + 1), V(b + 2)))
        for i in range(3, 47, 2):
            o.append(valu('v_max3_f32', vTMP[0], vTMP[0], V(b + i), V(b + i + 1)))
        o.append(valu('v_max_f32', vTMP[0], vTMP[0], V(b + 47)))
        return o

    def rebase(par, first):
        o = []
        o.append(valu('v_and_b32', vT[6], 63, V(0)))
        o.append(valu('v_xor_b32', vT[4], 16, vT[6]))
        o.append(valu('v_lshlrev_b32', vT[4], 2, vT[4]))
        o.append(valu('v_xor_b32', vT[5], 32, vT[6]))
        o.append(valu('v_lshlrev_b32', vT[5], 2, vT[5]))
        for qt in range(3):
            m = vT[qt]
            vals = [V(sreg(par, kt, qt)[1] + r) for kt in range(4) for r in range(4)]
            o.append(valu('v_max3_f32', m, vals[0], vals[1], vals[2]))
            for i in range(3, 15, 2):
                o.append(valu('v_max3_f32', m, m, vals[i], vals[i + 1]))
            o.append(valu('v_max_f32', m, m, vals[15]))
            o.append(ds_bperm(vT[7], vT[4], m))
            o.append(valu('v_max_f32', m, m, vT[7]))
            o.append(ds_bperm(vT[7], vT[5], m))
            o.append(valu('v_max_f32', m, m, vT[7]))
            if not first:
                o.append(valu('v_max_f32', m, 0, m))
            for v in vals:
                o.append(valu('v_sub_f32', v, v, m))
            if first:
                for r in range(4):
                    o.append(valu('v_sub_f32', V(negm(qt)[1] + r), 0, m))
            else:
                for r in range(4):
                    o.append(valu('v_sub_f32', V(negm(qt)[1] + r), V(negm(qt)[1] + r), m))
                o.append(valu('v_sub_f32', vT[7], 0, m))
                o.append(valu('v_exp_f32', vT[7], vT[7]))
                accs = [A(oacc(dt, qt)[1] + r) for dt in range(8) for r in range(4)] + [A(lacc(qt)[1] + r) for r in range(4)]
                for a_ in accs:
                    o.append(valu('v_accvgpr_read_b32', vT[6], a_))
                    o.append(valu('v_mul_f32', vT[6], vT[6], vT[7]))
                    o.append(valu('v_accvgpr_write_b32', a_, vT[6]))
        return o

    L.append(Ins('; ======== attention prologue', 'comment'))
    ex(kaddr(0))
    ex(Q.ensure(4))
    e(wait_vm_tag('K0'))
    e(wait_all(vm=False, lgkm=True))
    e(barrier())
    Q.allow(40)
    EV = int(os.environ.get('EV', '11'))
    ex(kreads())
    ex(sprinkle(qk_mfmas(0, True), Q, 6))
    ex(rebase(0, True))

    wl4 = None
    for c in range(8):
        par = c & 1
        if STAMP == 1 or c == 0:
            stamp()
        L.append(Ins(f'; ======== attention chunk {c}', 'comment'))
        ex(Q.ensure(min(64, 8 * c + 12)))
        if c < 7:
            ex(kaddr(c + 1))
            e(wait_vm_tag(f'K{c + 1}'))
        ex(vaddr(c))
        e(wait_vm_tag(f'V{c}'))
        e(wait_all(vm=False, lgkm=True))
        e(barrier())
        Q.allow(8 * (c + 5))
        body0 = len(L)
        pv = pv_mfmas()
        eo = exp_ops(par)
        vr = vreads()
        if c < 7:
            kr = kreads()
            qk = qk_mfmas(par ^ 1, False)
            mx = max_all(par ^ 1)
            ex(kr[:6])
            ex(interleave(qk[:24], kr[6:] + interleave(eo[:36], vr[:16])))
            ex(interleave(pv[:27], interleave(eo[36:], vr[16:])))
            ex(interleave(qk[24:], mx[:11], start=4))
        else:
            ex(interleave(eo[:36], vr[:16]))
            ex(interleave(pv[:27], interleave(eo[36:], vr[16:])))
        if c == 6:
            e(salu('s_lshl_b32', sT0, sH, 19))
            e(salu('s_lshl_b32', sT1, sW, 8))
            e(salu('s_add_u32', sWBASE, sT0, sT1))
            wl4, _ = gemm_phase(L, False, None)
            ex(wl4(0))
            ex(wl4(1))
        if c < 7:
            ex(interleave(pv[27:], mx[11:], start=6))
            L[body0:] = sprinkle(L[body0:], Q, EV)
            e(Ins(f"v_cmp_lt_f32 vcc, {fmt(sTH)}, {fmt(vTMP[0])}", 'valu', regs(vTMP[0]) + regs(sTH), ['vcc'], {'op': 'v_cmp'}))
            e(nop(3))
            e(Ins(f's_cbranch_vccnz L_slow{c}', 'branch', ['vcc']))
            e(Ins(f'L_back{c}:', 'label'))
            sp = rebase(par ^ 1, False)
            sp.append(nop(7))
            sp.append(nop(7))
            sp.append(Ins(f's_branch L_back{c}', 'branch'))
            slow_paths.append((f'L_slow{c}', sp))
        else:
            ex(pv[27:])

    stamp()
    L.append(Ins('; ======== O normalise -> LDS', 'comment'))
    ex(wl4(2))
    ex(wl4(3))
    ex(wl4(4))
    nT = [V(32 + i) for i in range(8)]
    e(valu('v_lshrrev_b32', nT[3], 1, vG))
    e(valu('v_and_b32', nT[4], 1, vG))
    e(valu('v_lshlrev_b32', nT[4], 3, nT[4]))
    e(valu('v_add_u32', nT[4], nT[4], vBB))
    e(salu('s_lshl_b32', sT0, sW, 8))
    e(valu('v_add_u32', nT[4], sT0, nT[4]))
    OW = [V(48 + d) for d in range(8)]
    for dt in range(8):
        e(valu('v_add_u32', nT[5], 2 * dt, nT[3]))
        e(valu('v_xor_b32', nT[5], nT[5], vBF))
        e(valu('v_lshl_add_u32', OW[dt], nT[5], 4, nT[4]))
    for qt in range(3):
        e(valu('v_accvgpr_read_b32', nT[6], A(lacc(qt)[1])))
        e(valu('v_rcp_f32', nT[6], nT[6]))
        for dt in range(8):
            b = 128 + ((qt * 8 + dt) % 5) * 6
            for r in range(4):
                e(valu('v_accvgpr_read_b32', V(b + r), A(oacc(dt, qt)[1] + r)))
                e(valu('v_mul_f32', V(b + r), V(b + r), nT[6]))
            e(valu('v_cvt_pk_bf16_f32', V(b + 4), V(b), V(b + 1)))
            e(valu('v_cvt_pk_bf16_f32', V(b + 5), V(b + 2), V(b + 3)))
            e(ds_write('ds_write_b64', OW[dt], V(b + 4, 2), qt * 16384))
    e(wait_all(vm=False, lgkm=True))
    e(barrier())
    stamp()
    L.append(Ins('; ======== phase 4: output projection', 'comment'))
    gemm(False, 0, None, pre_issued=5)

    stamp()
    L.append(Ins('; ======== store partials', 'comment'))
    e(valu('v_and_b32', vBA[0], 63, V(0)))
    e(valu('v_lshlrev_b32', vBA[0], 4, vBA[0]))
    for mt in range(3):
        for r in range(4):
            i = mt * 4 + r
            b = 64 + (i % 4) * 12
            for t in range(8):
                e(valu('v_accvgpr_read_b32', V(b + t), A(acc(t, mt)[1] + r)))
            for p in range(4):
                e(valu('v_cvt_pk_bf16_f32', V(b + 8 + p), V(b + 2 * p), V(b + 2 * p + 1)))
            if i and i % 4 == 0:
                e(salu('s_add_u32', sOUT, sOUT, 4096))
            e(buf_store(V(b + 8, 4), vBA[0], SRD_WS, sOUT, (i % 4) * 1024))
    if STAMP:
        e(wait_all())
        stamp()
        e(salu('s_mov_b32', S(SRD_WS[1] + 2), 0x10000000))
        e(salu('s_lshl_b32', sT0, S(2), 2))
        e(salu('s_add_u32', sT0, sT0, sW))
        e(salu('s_lshl_b32', sT0, sT0, 7))
        e(salu('s_add_u32', sT0, sT0, 64 << 20))
        e(valu('v_mov_b32', V(1), 0))
        e(valu('v_mov_b32', V(3), 0))
        for i in range(nst[0]):
            e(valu('v_mov_b32', V(2), S(STREGS[i])))
            e(buf_store(V(2, 2), V(1), SRD_WS, sT0, i * 8))
            e(wait_all())
    e(Ins('L_exit:', 'label'))
    e(Ins('s_endpgm', 'other'))
    lines, stats = finalize(L)
    print('main', stats, len(lines), file=sys.stderr)
    for name, sp in slow_paths:
        lines.append(name + ':')
        l2, _ = finalize(sp, entry_pad=True)
        lines += l2
    return lines


def build_qproj():
    L = []
    e = L.append
    ex = L.extend
    sHQ, sBQ, sROT = S(70), S(71), S(75)
    XFa = 0
    ACCv = 64
    AF = 32
    vDS = V(3)
    vXO = V(4)
    vAA = [[V(8 + s_ * 2 + hb) for hb in range(2)] for s_ in range(4)]
    T = [V(20 + i) for i in range(8)]
    e(Ins('s_cmp_ge_u32 s2, 256', 'salu', ['s2'], ['scc']))
    e(Ins('s_cbranch_scc1 Q_exit', 'branch', ['scc']))
    e(Ins('s_load_dwordx16 s[16:31], s[0:1], 0', 'smem', [], regs(S(16, 16))))
    e(Ins('s_load_dwordx8 s[32:39], s[0:1], 64', 'smem', [], regs(S(32, 8))))
    e(Ins('s_load_dwordx2 s[40:41], s[0:1], 96', 'smem', [], regs(S(40, 2))))
    e(salu('s_and_b32', sHQ, S(2), 31))
    e(salu('s_bfe_u32', sBQ, S(2), 0x20005))
    e(salu('s_lshr_b32', sBLK, S(2), 7))
    e(valu('v_lshrrev_b32', T[0], 6, V(0)))
    e(valu('v_readfirstlane_b32', sW, T[0]))
    e(valu('v_and_b32', vJ, 15, V(0)))
    e(valu('v_bfe_u32', vG, V(0), 4, 2))
    e(salu('s_mov_b32', sC, CSCALE))
    e(salu('s_lshl_b32', sROT, sBQ, 2))
    e(salu('s_bfe_u32', sT0, sW, 0x10001))
    e(salu('s_lshl_b32', sT0, sT0, 2))
    e(valu('v_or_b32', T[1], sT0, vG))
    e(valu('v_xor_b32', T[1], T[1], vJ))
    e(valu('v_lshlrev_b32', T[1], 4, T[1]))
    e(valu('v_lshl_add_u32', vDS, vG, 13, T[1]))
    e(valu('v_lshlrev_b32', T[1], 4, vG))
    e(valu('v_lshl_add_u32', vXO, vJ, 10, T[1]))
    e(valu('v_lshrrev_b32', T[2], 2, vJ))
    e(valu('v_and_b32', T[3], 1, vG))
    e(valu('v_lshl_or_b32', T[3], T[3], 2, T[2]))
    e(valu('v_and_b32', T[4], 3, vJ))
    e(valu('v_lshlrev_b32', T[4], 2, T[4]))
    e(valu('v_lshl_add_u32', T[5], vG, 3, T[2]))
    e(valu('v_lshlrev_b32', T[5], 8, T[5]))
    for s_ in range(4):
        e(valu('v_add_u32', T[6], s_, T[4]))
        e(valu('v_xor_b32', T[6], T[6], T[3]))
        e(valu('v_lshl_add_u32', vAA[s_][0], T[6], 4, T[5]))
        e(valu('v_add_u32', vAA[s_][1], 65536, vAA[s_][0]))
    e(Ins('s_waitcnt lgkmcnt(0)', 'other'))
    e(Ins(f's_cmp_eq_u32 {fmt(sBLK)}, 0', 'salu', regs(sBLK), ['scc']))
    for srd, pa, size in ((SRD_X, 16, 786432), (SRD_WQ, 22, 4194304)):
        e(Ins(f's_cselect_b64 s[{srd[1]}:{srd[1] + 1}], s[{pa}:{pa + 1}], s[{pa + 10}:{pa + 11}]', 'salu',
              ['scc'] + regs(S(pa, 2)) + regs(S(pa + 10, 2)), regs(S(srd[1], 2))))
        e(salu('s_mov_b32', S(srd[1] + 2), size))
        e(salu('s_mov_b32', S(srd[1] + 3), 0x20000))
    e(salu('s_mov_b64', S(SRD_WS[1], 2), S(40, 2)))
    e(salu('s_mov_b32', S(SRD_WS[1] + 2), WSSIZE))
    e(salu('s_mov_b32', S(SRD_WS[1] + 3), 0x20000))
    e(salu('s_lshl_b32', sB, sBQ, 2))
    e(salu('s_add_u32', sB, sB, sW))
    e(salu('s_mul_i32', sX[0], sB, 49152))
    e(salu('s_lshl_b32', sWBASE, sHQ, 8))
    e(salu('s_lshl_b32', sT0, sBLK, 4))
    e(salu('s_add_u32', sT0, sT0, sB))
    e(salu('s_lshl_b32', sT0, sT0, 5))
    e(salu('s_add_u32', sT0, sT0, sHQ))
    e(salu('s_mul_i32', sOUT, sT0, 12288))
    e(salu('s_add_u32', sOUT, sOUT, QBASE))

    def wdma(i, tag):
        o = [salu('s_add_u32', sT0, sW, 4 * i),
             salu('s_lshl_b32', sT1, sT0, 10),
             salu('s_add_u32', 'm0', sT1, 0),
             salu('s_lshl_b32', sT0, sT0, 2),
             salu('s_lshl_b32', sT1, sROT, 5),
             salu('s_add_u32', sT0, sT0, sT1),
             salu('s_and_b32', sT0, sT0, 511),
             salu('s_lshl_b32', sT0, sT0, 13),
             salu('s_add_u32', sT0, sT0, sWBASE),
             dma(vDS, SRD_WQ, sT0, 0, tag=tag)]
        return o

    def xl(ks):
        o = [salu('s_add_u32', sT0, sROT, ks),
             salu('s_and_b32', sT0, sT0, 15),
             salu('s_lshl_b32', sT0, sT0, 6),
             salu('s_add_u32', sT0, sT0, sX[0])]
        for mt in range(3):
            if mt:
                o.append(salu('s_add_u32', sT0, sT0, 16384))
            o.append(buf_load(A(XFa + (ks * 3 + mt) * 4, 4), vXO, SRD_X, sT0))
        return o

    def group(q):
        o = []
        for u in range(4):
            o += wdma(8 * q + 2 * u, f'W{q}') + wdma(8 * q + 2 * u + 1, f'W{q}') + xl(4 * q + u)
        return o

    def aread(ks, Tt):
        s_, hi = Tt >> 1, Tt & 1
        d = AF + (Tt % 8) * 4
        base = vAA[s_][ks >> 3]
        off = (ks & 7) * 8192 + hi * 8
        return [ds_read('ds_read_b64_tr_b16', V(d, 2), base, off),
                ds_read('ds_read_b64_tr_b16', V(d + 2, 2), base, off + 1024)]

    ex(group(0))
    ex(group(1))
    for q in range(4):
        e(wait_vm_tag(f'W{q}'))
        e(barrier())
        body = []
        seq = [(ks, Tt) for ks in range(4 * q, 4 * q + 4) for Tt in range(8)]
        PF_ = 4
        for n in range(PF_):
            body += aread(*seq[n])
        for n, (ks, Tt) in enumerate(seq):
            for mt in range(3):
                a_ = V(ACCv + (Tt * 3 + mt) * 4, 4)
                body.append(mfma(a_, V(AF + (Tt % 8) * 4, 4), A(XFa + (ks * 3 + mt) * 4, 4), a_ if ks else 0))
            if n + PF_ < len(seq):
                body += aread(*seq[n + PF_])
        if q + 2 < 4:
            g2 = group(q + 2)
            chunks = []
            cur = []
            for I in g2:
                cur.append(I)
                if I.kind in ('dma', 'vload'):
                    chunks.append(cur)
                    cur = []
            out = []
            k = 0
            nm = 0
            for I in body:
                out.append(I)
                if I.kind == 'mfma':
                    nm += 1
                    if nm % 4 == 0 and k < len(chunks):
                        out += chunks[k]
                        k += 1
            while k < len(chunks):
                out += chunks[k]
                k += 1
            body = out
        ex(body)
    e(valu('v_and_b32', T[0], 63, V(0)))
    e(valu('v_lshlrev_b32', T[0], 4, T[0]))
    for qt in range(3):
        for s_ in range(4):
            f = qt * 4 + s_
            d = 160 + (f % 4) * 4
            for hi in range(2):
                a_ = ACCv + ((2 * s_ + hi) * 3 + qt) * 4
                for r in range(4):
                    e(valu('v_mul_f32', V(a_ + r), sC, V(a_ + r)))
                e(valu('v_cvt_pk_bf16_f32', V(d + 2 * hi), V(a_), V(a_ + 1)))
                e(valu('v_cvt_pk_bf16_f32', V(d + 2 * hi + 1), V(a_ + 2), V(a_ + 3)))
            if f and f % 4 == 0:
                e(salu('s_add_u32', sOUT, sOUT, 4096))
            e(buf_store(V(d, 4), T[0], SRD_WS, sOUT, (f % 4) * 1024))
    e(Ins('Q_exit:', 'label'))
    e(Ins('s_endpgm', 'other'))
    lines, stats = finalize(L)
    print('qproj', stats, len(lines), file=sys.stderr)
    return lines


def build_reduce():
    L = []
    e = L.append
    e(Ins('s_cmp_ge_u32 s2, 384', 'salu', ['s2'], ['scc']))
    e(Ins('s_cbranch_scc1 R_exit', 'branch', ['scc']))
    e(Ins('s_load_dwordx2 s[4:5], s[0:1], 80', 'smem', [], regs(S(4, 2))))
    e(Ins('s_load_dwordx2 s[6:7], s[0:1], 96', 'smem', [], regs(S(6, 2))))
    e(salu('s_mul_i32', S(20), S(2), 5462))
    e(salu('s_lshr_b32', S(20), S(20), 16))
    e(salu('s_mul_i32', S(21), S(20), 12))
    e(salu('s_sub_u32', S(21), S(2), S(21)))
    e(salu('s_mul_i32', S(26), S(21), 11))
    e(salu('s_lshr_b32', S(26), S(26), 5))
    e(salu('s_mul_i32', S(27), S(26), 3))
    e(salu('s_sub_u32', S(27), S(21), S(27)))
    e(valu('v_lshlrev_b32', V(3), 4, V(0)))
    e(salu('s_mul_i32', S(23), S(20), 8 * 49152))
    e(salu('s_mul_i32', S(28), S(26), 12288))
    e(salu('s_add_u32', S(23), S(23), S(28)))
    e(salu('s_lshl_b32', S(28), S(27), 12))
    e(salu('s_add_u32', S(23), S(23), S(28)))
    e(valu('v_and_b32', V(1), 15, V(0)))
    e(valu('v_bfe_u32', V(2), V(0), 4, 2))
    e(valu('v_lshlrev_b32', V(2), 6, V(2)))
    e(valu('v_lshl_add_u32', V(4), V(1), 11, V(2)))
    e(valu('v_lshrrev_b32', V(2), 6, V(0)))
    e(valu('v_lshl_add_u32', V(4), V(2), 4, V(4)))
    e(salu('s_and_b32', S(24), S(20), 15))
    e(salu('s_mul_i32', S(24), S(24), 48 * 2048))
    e(salu('s_lshr_b32', S(25), S(20), 4))
    e(salu('s_lshl_b32', S(25), S(25), 10))
    e(salu('s_add_u32', S(24), S(24), S(25)))
    e(salu('s_lshl_b32', S(25), S(27), 15))
    e(salu('s_add_u32', S(24), S(24), S(25)))
    e(salu('s_lshl_b32', S(25), S(26), 8))
    e(salu('s_add_u32', S(24), S(24), S(25)))
    e(Ins('s_waitcnt lgkmcnt(0)', 'other'))
    e(salu('s_mov_b64', S(8, 2), S(4, 2)))
    e(salu('s_mov_b32', S(10), 16 * 48 * 1024 * 2))
    e(salu('s_mov_b32', S(11), 0x20000))
    e(salu('s_mov_b64', S(12, 2), S(6, 2)))
    e(salu('s_mov_b32', S(14), 32 * 8 * 48 * 1024))
    e(salu('s_mov_b32', S(15), 0x20000))
    B0 = 8
    for hh in range(8):
        if hh:
            e(salu('s_add_u32', S(23), S(23), 49152))
        e(buf_load(V(B0 + hh * 4, 4), V(3), S(12, 4), S(23)))
    AC = B0 + 32
    e(salu('s_mov_b32', S(30), 0xffff0000))
    for hh in range(8):
        for i in range(4):
            src = V(B0 + hh * 4 + i)
            lo, hi = V(AC + 2 * i), V(AC + 2 * i + 1)
            if hh == 0:
                e(valu('v_lshlrev_b32', lo, 16, src))
                e(valu('v_and_b32', hi, S(30), src))
            else:
                t0, t1 = V(AC + 8 + (i & 1) * 2), V(AC + 9 + (i & 1) * 2)
                e(valu('v_lshlrev_b32', t0, 16, src))
                e(valu('v_and_b32', t1, S(30), src))
                e(valu('v_add_f32', lo, lo, t0))
                e(valu('v_add_f32', hi, hi, t1))
    for p in range(4):
        e(valu('v_cvt_pk_bf16_f32', V(B0 + p), V(AC + 2 * p), V(AC + 2 * p + 1)))
    e(buf_store(V(B0, 4), V(4), S(8, 4), S(24)))
    e(Ins('R_exit:', 'label'))
    e(Ins('s_endpgm', 'other'))
    lines, stats = finalize(L)
    return lines


def kd(name, vgpr, accum, sgpr):
    return f""".amdhsa_kernel {name}
  .amdhsa_next_free_vgpr {vgpr}
  .amdhsa_next_free_sgpr {sgpr}
  .amdhsa_accum_offset {accum}
  .amdhsa_group_segment_fixed_size 0
  .amdhsa_kernarg_size 104
  .amdhsa_user_sgpr_count 2
  .amdhsa_user_sgpr_kernarg_segment_ptr 1
  .amdhsa_system_sgpr_workgroup_id_x 1
.end_amdhsa_kernel
"""


for wg in range(384 + 16):
    assert (wg * 5462) >> 16 == wg // 12
for i in range(48):
    assert (i * 43) >> 7 == i // 3
for rq in range(12):
    assert (rq * 11) >> 5 == rq // 3

qp = build_qproj()
main = build_main()
red = build_reduce()
txt = HDR
txt += '; @launch kernel=qproj_kernel grid=(256,1,1) block=(256,1,1) lds=131072\n'
txt += f'; @launch kernel={NAME}_kernel grid=(256,1,1) block=(256,1,1) lds=163840\n'
txt += '; @launch kernel=reduce_kernel grid=(384,1,1) block=(256,1,1) lds=0\n'
txt += '.amdgcn_target "amdgcn-amd-amdhsa--gfx950"\n.text\n'
txt += f'.globl {NAME}_kernel\n.p2align 8\n.type {NAME}_kernel,@function\n{NAME}_kernel:\n'
txt += '\n'.join(main) + '\n'
txt += '.globl qproj_kernel\n.p2align 8\n.type qproj_kernel,@function\nqproj_kernel:\n'
txt += '\n'.join(qp) + '\n'
txt += '.globl reduce_kernel\n.p2align 8\n.type reduce_kernel,@function\nreduce_kernel:\n'
txt += '\n'.join(red) + '\n'
txt += '.section .rodata,"a"\n.p2align 6\n'
txt += kd(f'{NAME}_kernel', 512, 256, 96)
txt += '.p2align 6\n'
txt += kd('reduce_kernel', 56, 56, 32)
txt += '.p2align 6\n'
txt += kd('qproj_kernel', 448, 256, 96)
open(OUT, 'w').write(txt)
print('wrote', OUT, len(txt), file=sys.stderr)
```

```python
import sys
import struct
from asmlib import *
import os
KVFLAGS = os.environ.get('KVFLAGS', 'nt')
WFLAGS = os.environ.get('WFLAGS', '')

NAME = 'concat_heads__gqa_block_cached__gqa_block_cached__near_ridge'
OUT = sys.argv[1] if len(sys.argv) > 1 else f'cdna_kernels/{NAME}.s'

HDR = open(f'cdna_kernels/{NAME}.s.ref').read().split('; Override launch')[0]


def f32bits(x):
    return struct.unpack('<I', struct.pack('<f', x))[0]


CSCALE = f32bits(1.4426950408889634 / (128.0 ** 0.5))
THRESH = f32bits(16.0)

sPTR = 16
SRD_X, SRD_K, SRD_V, SRD_WQ, SRD_WO, SRD_WS = S(44, 4), S(48, 4), S(52, 4), S(56, 4), S(60, 4), S(64, 4)
sH, sB, sBLK, sW = S(70), S(71), S(72), S(73)
sX = [S(74), S(75), S(76)]
sWOFF = S(77)
sKV = S(78)
sT0, sT1 = S(79), S(80)
sSELLO, sSELHI = S(82), S(83)
sLDSW = S(84)
sOUT = S(85)
sC = S(86)
sTH = S(87)
sWBASE = S(88)
sKK = S(89)
sT2 = S(92)

vJ, vG = V(1), V(2)
vOFFWQ0 = V(3)
vBF = V(4)
vBB = V(5)
vBA = [V(6), V(7)]
vOFFK = [V(12 + i) for i in range(4)]
vOFFV = [V(16 + i) for i in range(2)]
vKB = [V(18 + s) for s in range(4)]
vVB = [V(22 + d) for d in range(8)]
vOFFWO = [V(30), V(31)]
TR = 32
RAW = 64
NB = 6
NEGM = 32
ONES = V(44, 4)
vKA = [V(48 + s) for s in range(4)]
vVA = [V(52 + d) for d in range(8)]
vTMP = [V(60 + i) for i in range(4)]
SB = [64, 112]
QF = 160
PF = 224
vT = [V(248 + i) for i in range(8)]
ACC = 0
XB = 96
OACC = 0
LACC = 96
KF = 128
VF = 192


def acc(t, mt):
    return A(ACC + (t * 3 + mt) * 4, 4)


def tr(t):
    return V(TR + t * 4, 4)


def raw(buf, e):
    return V(RAW + buf * 32 + e * 4, 4)


def xf(ks, mt):
    return A(XB + ((ks % 3) * 3 + mt) * 4, 4)


def sreg(par, kt, qt):
    return V(SB[par] + (kt * 3 + qt) * 4, 4)


def qf(qt, s):
    return V(QF + (qt * 4 + s) * 4, 4)


def pf(ks, qt):
    return V(PF + (ks * 3 + qt) * 4, 4)


def negm(qt):
    return V(NEGM + qt * 4, 4)


def oacc(dt, qt):
    return A(OACC + (dt * 3 + qt) * 4, 4)


def lacc(qt):
    return A(LACC + qt * 4, 4)


def kf(kt, s):
    return A(KF + (kt * 4 + s) * 4, 4)


def vf(dt, ks):
    return A(VF + (dt * 2 + ks) * 4, 4)


def perms(buf, t):
    o = []
    for p in range(4):
        lo = V(RAW + buf * 32 + (2 * p) * 4 + t // 2)
        hi = V(RAW + buf * 32 + (2 * p + 1) * 4 + t // 2)
        o.append(valu('v_perm_b32', V(TR + t * 4 + p), hi, lo, sSELHI if t & 1 else sSELLO))
    return o


def dma_unit(kind, c, i):
    slot = (c % 5) * 32768 + (16384 if kind == 'V' else 0)
    voff = vOFFK[i] if kind == 'K' else vOFFV[i & 1]
    return [salu('s_add_u32', 'm0', sLDSW, slot),
            salu('s_add_u32', sT0, sKV, c * 16384),
            dma(voff, SRD_K if kind == 'K' else SRD_V, sT0, i * 1024, tag=f'{kind}{c}', flags=KVFLAGS)]


class DmaQ:
    def __init__(self):
        self.units = [(kind, c, i) for c in range(8) for kind in 'KV' for i in range(4)]
        self.pos = 0
        self.limit = 0

    def allow(self, n):
        self.limit = max(self.limit, n)

    def pop(self, n=1):
        o = []
        while n > 0 and self.pos < min(self.limit, len(self.units)):
            o += dma_unit(*self.units[self.pos])
            self.pos += 1
            n -= 1
        return o

    def ensure(self, n):
        return self.pop(max(0, n - self.pos))


def sprinkle(stream, q, every, first=0):
    out = []
    k = -first
    for I in stream:
        out.append(I)
        if I.kind == 'mfma':
            k += 1
            if k > 0 and k % every == 0:
                out += q.pop(1)
    return out


def gemm_phase(L, is_q, bfrag, extra=None):
    def wloads(ks):
        o = []
        buf = (ks + (0 if is_q else 3)) % NB
        o.append(salu('s_add_u32', sKK, sB, ks))
        o.append(salu('s_and_b32', sKK, sKK, 15))
        o.append(salu('s_lshl_b32', sKK, sKK, 18 if is_q else 15))
        o.append(salu('s_add_u32', sWOFF, sWBASE, sKK))
        if is_q:
            for e in range(8):
                if e:
                    o.append(salu('s_add_u32', sWOFF, sWOFF, 8192))
                o.append(buf_load(raw(buf, e), vOFFWQ0, SRD_WQ, sWOFF, flags=WFLAGS))
        else:
            for e in range(8):
                o.append(buf_load(raw(buf, e), vOFFWO[e >> 2], SRD_WO, sWOFF, (e & 3) * 1024, flags=WFLAGS))
        return o

    def xloads(ks):
        return []

    return wloads, xloads


STAMP = int(os.environ.get('STAMP', '0'))
STREGS = [3, 4, 5, 6, 7, 8, 9, 10, 11, 12, 13, 14, 15, 42, 43, 68]


def build_main():
    L = []
    e = L.append
    ex = L.extend
    slow_paths = []
    nst = [0]

    def stamp():
        if not STAMP:
            return
        e(wait_all(vm=False, lgkm=True))
        e(Ins('s_memtime s[90:91]', 'smem', [], ['s90', 's91']))
        e(Ins('s_waitcnt lgkmcnt(0)', 'other'))
        e(salu('s_mov_b32', S(STREGS[nst[0]]), S(90)))
        nst[0] += 1

    e(Ins('s_cmp_ge_u32 s2, 256', 'salu', ['s2'], ['scc']))
    e(Ins('s_cbranch_scc1 L_exit', 'branch', ['scc']))
    e(Ins('s_load_dwordx16 s[16:31], s[0:1], 0', 'smem', [], regs(S(16, 16))))
    e(Ins('s_load_dwordx8 s[32:39], s[0:1], 64', 'smem', [], regs(S(32, 8))))
    e(Ins('s_load_dwordx2 s[40:41], s[0:1], 96', 'smem', [], regs(S(40, 2))))
    e(salu('s_and_b32', sH, S(2), 7))
    e(salu('s_lshr_b32', sT0, S(2), 3))
    e(salu('s_and_b32', sB, sT0, 15))
    e(salu('s_lshr_b32', sBLK, sT0, 4))
    e(valu('v_lshrrev_b32', vT[0], 6, V(0)))
    e(valu('v_readfirstlane_b32', sW, vT[0]))
    e(valu('v_and_b32', vJ, 15, V(0)))
    e(valu('v_bfe_u32', vG, V(0), 4, 2))
    e(salu('s_mov_b32', sSELLO, 0x05040100))
    e(salu('s_mov_b32', sSELHI, 0x07060302))
    e(salu('s_mov_b32', sC, CSCALE))
    e(salu('s_mov_b32', sTH, THRESH))
    e(valu('v_lshlrev_b32', vT[0], 4, vJ))
    e(valu('v_lshl_add_u32', vOFFWQ0, vG, 16, vT[0]))
    e(valu('v_add_u32', vBF, 4, vJ))
    e(valu('v_and_b32', vBF, 15, vBF))
    e(valu('v_lshlrev_b32', vBB, 10, vJ))
    e(valu('v_lshl_add_u32', vOFFWO[0], vG, 13, vT[0]))
    e(valu('v_add_u32', vOFFWO[1], 4096, vOFFWO[0]))
    for i in range(4):
        e(valu('v_add_u32', vT[1], 4 * i + 4, vG))
        e(valu('v_and_b32', vT[1], 15, vT[1]))
        e(valu('v_xor_b32', vT[1], vT[1], vJ))
        e(valu('v_lshlrev_b32', vT[1], 4, vT[1]))
        e(valu('v_lshl_add_u32', vOFFK[i], vG, 8, vT[1]))
    for i in range(2):
        e(valu('v_add_u32', vT[1], 4 * i, vG))
        e(valu('v_lshlrev_b32', vT[1], 1, vT[1]))
        e(valu('v_xor_b32', vT[1], vT[1], vJ))
        e(valu('v_lshlrev_b32', vT[1], 4, vT[1]))
        e(valu('v_lshl_add_u32', vOFFV[i], vG, 8, vT[1]))
    e(valu('v_add_u32', vT[2], 4, vJ))
    e(valu('v_and_b32', vT[2], 15, vT[2]))
    for s in range(4):
        e(valu('v_lshl_add_u32', vT[1], vG, 2, s))
        e(valu('v_xor_b32', vT[1], vT[1], vT[2]))
        e(valu('v_lshlrev_b32', vT[1], 4, vT[1]))
        e(valu('v_lshl_add_u32', vKB[s], vJ, 8, vT[1]))
    e(valu('v_lshrrev_b32', vT[3], 2, vJ))
    e(valu('v_lshl_add_u32', vT[4], vG, 2, vT[3]))
    e(valu('v_and_b32', vT[5], 7, vT[4]))
    e(valu('v_and_b32', vT[6], 3, vJ))
    e(valu('v_lshlrev_b32', vT[6], 3, vT[6]))
    e(valu('v_lshl_add_u32', vT[6], vT[4], 8, vT[6]))
    for dt in range(8):
        e(valu('v_xor_b32', vT[1], dt, vT[5]))
        e(valu('v_lshl_add_u32', vVB[dt], vT[1], 5, vT[6]))
    e(Ins('s_waitcnt lgkmcnt(0)', 'other'))
    e(Ins(f's_cmp_eq_u32 {fmt(sBLK)}, 0', 'salu', regs(sBLK), ['scc']))
    for srd, pa, size in ((SRD_X, 16, 786432), (SRD_K, 18, 16777216), (SRD_V, 20, 16777216),
                          (SRD_WQ, 22, 4194304), (SRD_WO, 24, 4194304)):
        e(Ins(f's_cselect_b64 s[{srd[1]}:{srd[1] + 1}], s[{pa}:{pa + 1}], s[{pa + 10}:{pa + 11}]', 'salu',
              ['scc'] + regs(S(pa, 2)) + regs(S(pa + 10, 2)), regs(S(srd[1], 2))))
        e(salu('s_mov_b32', S(srd[1] + 2), size))
        e(salu('s_mov_b32', S(srd[1] + 3), 0x20000))
    e(salu('s_mov_b64', S(SRD_WS[1], 2), S(40, 2)))
    e(salu('s_mov_b32', S(SRD_WS[1] + 2), 32 * 8 * 48 * 1024))
    e(salu('s_mov_b32', S(SRD_WS[1] + 3), 0x20000))
    e(salu('s_mul_i32', sX[0], sB, 49152))
    e(salu('s_add_u32', sX[1], sX[0], 16384))
    e(salu('s_add_u32', sX[2], sX[0], 32768))
    e(salu('s_lshl_b32', sT0, sH, 2))
    e(salu('s_add_u32', sT0, sT0, sW))
    e(salu('s_lshl_b32', sWBASE, sT0, 8))
    e(salu('s_lshl_b32', sLDSW, sW, 12))
    e(salu('s_lshl_b32', sT0, sB, 3))
    e(salu('s_add_u32', sT0, sT0, sH))
    e(salu('s_lshl_b32', sKV, sT0, 17))
    e(salu('s_add_u32', sKV, sKV, sLDSW))
    e(salu('s_lshl_b32', sT1, sBLK, 7))
    e(salu('s_add_u32', sT0, sT0, sT1))
    e(salu('s_mul_i32', sOUT, sT0, 48 * 1024))
    e(salu('s_mul_i32', sT1, sW, 12288))
    e(salu('s_add_u32', sOUT, sOUT, sT1))

    XREG = 112 * 1024
    vXA = V(8)
    vXS = V(9)
    Q = DmaQ()

    def bfrag_reads(region, ks):
        o = []
        if region == XREG:
            if ks >= 4 and ks % 4 == 0:
                o.append(wait_vm_tag(f'X{ks // 4}'))
                o.append(barrier())
            for mt in range(3):
                o.append(ds_read('ds_read_b128', xf(ks, mt), vXA, (ks * 3 + mt) * 1024))
            return o
        o.append(salu('s_add_u32', sKK, sB, ks))
        o.append(salu('s_and_b32', sT2, sKK, 3))
        o.append(salu('s_lshl_b32', sT2, sT2, 2))
        o.append(salu('s_bfe_u32', sKK, sKK, 0x20002))
        o.append(salu('s_lshl_b32', sKK, sKK, 8))
        o.append(salu('s_add_u32', sKK, sKK, region))
        ad = vBA[ks & 1]
        o.append(valu('v_add_u32', ad, sT2, vG))
        o.append(valu('v_xor_b32', ad, ad, vBF))
        o.append(valu('v_lshl_add_u32', ad, ad, 4, vBB))
        o.append(valu('v_add_u32', ad, sKK, ad))
        for mt in range(3):
            o.append(ds_read('ds_read_b128', xf(ks, mt), ad, mt * 16384))
        return o

    def gemm(is_q, region, extra, pre_issued=0, ramp=False):
        wloads, _ = gemm_phase(L, is_q, None)
        nxt = pre_issued
        if not ramp:
            while nxt < NB:
                ex(wloads(nxt))
                nxt += 1
        ex(bfrag_reads(region, 0))
        ex(bfrag_reads(region, 1))
        boff = 0 if is_q else 3
        for t in range(8):
            ex(perms(boff, t))
        ex(wloads(nxt))
        nxt += 1
        for ks in range(16):
            if STAMP == 2 and ks % 4 == 0:
                stamp()
            if ks + 2 < 16:
                ex(bfrag_reads(region, ks + 2))
            for t in range(8):
                for mt in range(3):
                    e(mfma(acc(t, mt), tr(t), xf(ks, mt), acc(t, mt) if ks else 0))
                if ks + 1 < 16:
                    ex(perms((ks + 1 + boff) % NB, t))
                if t == 3 and nxt < 16 and nxt < ks + NB:
                    ex(wloads(nxt))
                    nxt += 1
            if nxt < 16 and nxt <= ks + 1 + NB:
                ex(wloads(nxt))
                nxt += 1
            if extra and ks in extra:
                ex(extra[ks]())

    L.append(Ins('; ======== phase 1: Q projection', 'comment'))
    stamp()
    e(valu('v_and_b32', V(32), 63, V(0)))
    e(valu('v_lshrrev_b32', V(33), 2, V(32)))
    e(valu('v_and_b32', V(34), 3, V(32)))
    e(valu('v_lshlrev_b32', V(34), 4, V(34)))
    e(valu('v_lshl_add_u32', vXS, V(33), 10, V(34)))
    e(valu('v_lshlrev_b32', V(34), 4, vG))
    e(valu('v_lshl_add_u32', vXA, vJ, 6, V(34)))
    e(valu('v_add_u32', vXA, XREG, vXA))

    def xdma(n):
        o = []
        o.append(salu('s_add_u32', sT0, sW, 4 * n))
        o.append(salu('s_mul_i32', sT1, sT0, 43))
        o.append(salu('s_lshr_b32', sT1, sT1, 7))
        o.append(salu('s_mul_i32', sT2, sT1, 3))
        o.append(salu('s_sub_u32', sT2, sT0, sT2))
        o.append(salu('s_lshl_b32', sT0, sT0, 10))
        o.append(salu('s_add_u32', 'm0', sT0, XREG))
        o.append(salu('s_add_u32', sT1, sT1, sB))
        o.append(salu('s_and_b32', sT1, sT1, 15))
        o.append(salu('s_lshl_b32', sT1, sT1, 6))
        o.append(salu('s_lshl_b32', sT2, sT2, 14))
        o.append(salu('s_add_u32', sT1, sT1, sT2))
        o.append(salu('s_add_u32', sT1, sT1, sX[0]))
        o.append(dma(vXS, SRD_X, sT1, 0, tag=f'X{n // 3}'))
        return o
    wl1, _ = gemm_phase(L, True, None)
    for n in range(3):
        ex(xdma(n))
    ex(wl1(0))
    for n in range(3, 12):
        ex(xdma(n))
    ex(wl1(1))
    e(wait_vm_tag('X0'))
    e(barrier())
    if STAMP == 2:
        stamp()
    Q.allow(28)
    P1START = int(os.environ.get('P1START', '2'))
    P1PER = int(os.environ.get('P1PER', '1'))
    extra = {ks: (lambda: Q.pop(P1PER)) for ks in range(P1START, 16)}
    gemm(True, XREG, extra, pre_issued=2, ramp=True)

    stamp()
    L.append(Ins('; ======== Q fragments', 'comment'))
    n = 0
    for qt in range(3):
        for s in range(4):
            for p in range(4):
                a0 = V(208 + (n % 8) * 2)
                a1 = V(209 + (n % 8) * 2)
                n += 1
                e(valu('v_accvgpr_read_b32', a0, A(acc(2 * p, qt)[1] + s)))
                e(valu('v_accvgpr_read_b32', a1, A(acc(2 * p + 1, qt)[1] + s)))
                e(valu('v_mul_f32', a0, sC, a0))
                e(valu('v_mul_f32', a1, sC, a1))
                e(valu('v_cvt_pk_bf16_f32', V(qf(qt, s)[1] + p), a0, a1))
    for r in range(4):
        e(valu('v_mov_b32', V(ONES[1] + r), 0x3f803f80))

    def kaddr(c):
        return [valu('v_add_u32', vKA[s], (c % 5) * 32768, vKB[s]) for s in range(4)]

    def vaddr(c):
        return [valu('v_add_u32', vVA[d], (c % 5) * 32768 + 16384, vVB[d]) for d in range(8)]

    def kreads():
        return [ds_read('ds_read_b128', kf(kt, s), vKA[s], kt * 4096) for kt in range(4) for s in range(4)]

    def vreads():
        o = []
        for ks in range(2):
            for dt in range(8):
                for hf in range(2):
                    o.append(ds_read('ds_read_b64_tr_b16', A(vf(dt, ks)[1] + 2 * hf, 2), vVA[dt], ks * 8192 + hf * 4096))
        return o

    def qk_mfmas(par, first):
        o = []
        for kt in range(4):
            for s in range(4):
                for qt in range(3):
                    C = sreg(par, kt, qt) if s else (0 if first else negm(qt))
                    o.append(mfma(sreg(par, kt, qt), kf(kt, s), qf(qt, s), C))
        return o

    def exp_ops(par):
        o = []
        for kt in range(4):
            for qt in range(3):
                b = sreg(par, kt, qt)[1]
                for r in range(4):
                    o.append(valu('v_exp_f32', V(b + r), V(b + r)))
                pb = pf(kt // 2, qt)[1] + (kt & 1) * 2
                o.append(valu('v_cvt_pk_bf16_f32', V(pb), V(b), V(b + 1)))
                o.append(valu('v_cvt_pk_bf16_f32', V(pb + 1), V(b + 2), V(b + 3)))
        return o

    def pv_mfmas(first=False):
        o = []
        for ks in range(2):
            z = first and ks == 0
            for dt in range(8):
                for qt in range(3):
                    o.append(mfma(oacc(dt, qt), vf(dt, ks), pf(ks, qt), 0 if z else oacc(dt, qt)))
            for qt in range(3):
                o.append(mfma(lacc(qt), ONES, pf(ks, qt), 0 if z else lacc(qt)))
        return o

    def max_all(par):
        o = []
        b = SB[par]
        o.append(valu('v_max3_f32', vTMP[0], V(b), V(b + 1), V(b + 2)))
        for i in range(3, 47, 2):
            o.append(valu('v_max3_f32', vTMP[0], vTMP[0], V(b + i), V(b + i + 1)))
        o.append(valu('v_max_f32', vTMP[0], vTMP[0], V(b + 47)))
        return o

    def rebase(par, first):
        o = []
        o.append(valu('v_and_b32', vT[6], 63, V(0)))
        o.append(valu('v_xor_b32', vT[4], 16, vT[6]))
        o.append(valu('v_lshlrev_b32', vT[4], 2, vT[4]))
        o.append(valu('v_xor_b32', vT[5], 32, vT[6]))
        o.append(valu('v_lshlrev_b32', vT[5], 2, vT[5]))
        for qt in range(3):
            m = vT[qt]
            vals = [V(sreg(par, kt, qt)[1] + r) for kt in range(4) for r in range(4)]
            o.append(valu('v_max3_f32', m, vals[0], vals[1], vals[2]))
            for i in range(3, 15, 2):
                o.append(valu('v_max3_f32', m, m, vals[i], vals[i + 1]))
            o.append(valu('v_max_f32', m, m, vals[15]))
            o.append(ds_bperm(vT[7], vT[4], m))
            o.append(valu('v_max_f32', m, m, vT[7]))
            o.append(ds_bperm(vT[7], vT[5], m))
            o.append(valu('v_max_f32', m, m, vT[7]))
            if not first:
                o.append(valu('v_max_f32', m, 0, m))
            for v in vals:
                o.append(valu('v_sub_f32', v, v, m))
            if first:
                for r in range(4):
                    o.append(valu('v_sub_f32', V(negm(qt)[1] + r), 0, m))
            else:
                for r in range(4):
                    o.append(valu('v_sub_f32', V(negm(qt)[1] + r), V(negm(qt)[1] + r), m))
                o.append(valu('v_sub_f32', vT[7], 0, m))
                o.append(valu('v_exp_f32', vT[7], vT[7]))
                accs = [A(oacc(dt, qt)[1] + r) for dt in range(8) for r in range(4)] + [A(lacc(qt)[1] + r) for r in range(4)]
                for a_ in accs:
                    o.append(valu('v_accvgpr_read_b32', vT[6], a_))
                    o.append(valu('v_mul_f32', vT[6], vT[6], vT[7]))
                    o.append(valu('v_accvgpr_write_b32', a_, vT[6]))
        return o

    L.append(Ins('; ======== attention prologue', 'comment'))
    ex(kaddr(0))
    ex(Q.ensure(4))
    e(wait_vm_tag('K0'))
    e(wait_all(vm=False, lgkm=True))
    e(barrier())
    Q.allow(40)
    EV = int(os.environ.get('EV', '11'))
    ex(kreads())
    ex(sprinkle(qk_mfmas(0, True), Q, 8))
    ex(rebase(0, True))

    wl4 = None
    for c in range(8):
        par = c & 1
        if STAMP == 1 or c == 0:
            stamp()
        L.append(Ins(f'; ======== attention chunk {c}', 'comment'))
        ex(Q.ensure(min(64, 8 * c + 12)))
        if c < 7:
            ex(kaddr(c + 1))
            e(wait_vm_tag(f'K{c + 1}'))
        ex(vaddr(c))
        e(wait_vm_tag(f'V{c}'))
        e(wait_all(vm=False, lgkm=True))
        e(barrier())
        Q.allow(8 * (c + 5))
        body0 = len(L)
        pv = pv_mfmas(c == 0)
        eo = exp_ops(par)
        vr = vreads()
        if c < 7:
            kr = kreads()
            qk = qk_mfmas(par ^ 1, False)
            mx = max_all(par ^ 1)
            ex(kr[:6])
            ex(interleave(qk[:24], kr[6:] + interleave(eo[:36], vr[:16])))
            ex(interleave(pv[:27], interleave(eo[36:], vr[16:])))
            ex(interleave(qk[24:], mx[:11], start=4))
        else:
            ex(interleave(eo[:36], vr[:16]))
            ex(interleave(pv[:27], interleave(eo[36:], vr[16:])))
        if c == 6:
            e(salu('s_lshl_b32', sT0, sH, 19))
            e(salu('s_lshl_b32', sT1, sW, 8))
            e(salu('s_add_u32', sWBASE, sT0, sT1))
            wl4, _ = gemm_phase(L, False, None)
            ex(wl4(0))
            ex(wl4(1))
        if c < 7:
            ex(interleave(pv[27:], mx[11:], start=6))
            L[body0:] = sprinkle(L[body0:], Q, EV)
            e(Ins(f"v_cmp_lt_f32 vcc, {fmt(sTH)}, {fmt(vTMP[0])}", 'valu', regs(vTMP[0]) + regs(sTH), ['vcc'], {'op': 'v_cmp'}))
            e(nop(3))
            e(Ins(f's_cbranch_vccnz L_slow{c}', 'branch', ['vcc']))
            e(Ins(f'L_back{c}:', 'label'))
            sp = rebase(par ^ 1, False)
            sp.append(nop(7))
            sp.append(nop(7))
            sp.append(Ins(f's_branch L_back{c}', 'branch'))
            slow_paths.append((f'L_slow{c}', sp))
        else:
            ex(pv[27:])

    stamp()
    L.append(Ins('; ======== O normalise -> LDS', 'comment'))
    ex(wl4(2))
    ex(wl4(3))
    ex(wl4(4))
    nT = [V(32 + i) for i in range(8)]
    e(valu('v_lshrrev_b32', nT[3], 1, vG))
    e(valu('v_and_b32', nT[4], 1, vG))
    e(valu('v_lshlrev_b32', nT[4], 3, nT[4]))
    e(valu('v_add_u32', nT[4], nT[4], vBB))
    e(salu('s_lshl_b32', sT0, sW, 8))
    e(valu('v_add_u32', nT[4], sT0, nT[4]))
    OW = [V(48 + d) for d in range(8)]
    for dt in range(8):
        e(valu('v_add_u32', nT[5], 2 * dt, nT[3]))
        e(valu('v_xor_b32', nT[5], nT[5], vBF))
        e(valu('v_lshl_add_u32', OW[dt], nT[5], 4, nT[4]))
    for qt in range(3):
        e(valu('v_accvgpr_read_b32', nT[6], A(lacc(qt)[1])))
        e(valu('v_rcp_f32', nT[6], nT[6]))
        for dt in range(8):
            b = 128 + ((qt * 8 + dt) % 5) * 6
            for r in range(4):
                e(valu('v_accvgpr_read_b32', V(b + r), A(oacc(dt, qt)[1] + r)))
                e(valu('v_mul_f32', V(b + r), V(b + r), nT[6]))
            e(valu('v_cvt_pk_bf16_f32', V(b + 4), V(b), V(b + 1)))
            e(valu('v_cvt_pk_bf16_f32', V(b + 5), V(b + 2), V(b + 3)))
            e(ds_write('ds_write_b64', OW[dt], V(b + 4, 2), qt * 16384))
    e(wait_all(vm=False, lgkm=True))
    e(barrier())
    stamp()
    L.append(Ins('; ======== phase 4: output projection', 'comment'))
    gemm(False, 0, None, pre_issued=5)

    stamp()
    L.append(Ins('; ======== store partials', 'comment'))
    e(valu('v_and_b32', vBA[0], 63, V(0)))
    e(valu('v_lshlrev_b32', vBA[0], 4, vBA[0]))
    for mt in range(3):
        for r in range(4):
            i = mt * 4 + r
            b = 64 + (i % 4) * 12
            for t in range(8):
                e(valu('v_accvgpr_read_b32', V(b + t), A(acc(t, mt)[1] + r)))
            for p in range(4):
                e(valu('v_cvt_pk_bf16_f32', V(b + 8 + p), V(b + 2 * p), V(b + 2 * p + 1)))
            if i and i % 4 == 0:
                e(salu('s_add_u32', sOUT, sOUT, 4096))
            e(buf_store(V(b + 8, 4), vBA[0], SRD_WS, sOUT, (i % 4) * 1024, flags=os.environ.get('PSTFLAGS', 'sc0 sc1')))
    if STAMP:
        e(wait_all())
        stamp()
        e(salu('s_mov_b32', S(SRD_WS[1] + 2), 0x10000000))
        e(salu('s_lshl_b32', sT0, S(2), 2))
        e(salu('s_add_u32', sT0, sT0, sW))
        e(salu('s_lshl_b32', sT0, sT0, 7))
        e(salu('s_add_u32', sT0, sT0, 64 << 20))
        e(valu('v_mov_b32', V(1), 0))
        e(valu('v_mov_b32', V(3), 0))
        for i in range(nst[0]):
            e(valu('v_mov_b32', V(2), S(STREGS[i])))
            e(buf_store(V(2, 2), V(1), SRD_WS, sT0, i * 8))
            e(wait_all())
    e(Ins('L_exit:', 'label'))
    e(Ins('s_endpgm', 'other'))
    lines, stats = finalize(L)
    print('main', stats, len(lines), file=sys.stderr)
    for name, sp in slow_paths:
        lines.append(name + ':')
        l2, _ = finalize(sp, entry_pad=True)
        lines += l2
    return lines


def build_reduce():
    L = []
    e = L.append
    e(Ins('s_cmp_ge_u32 s2, 384', 'salu', ['s2'], ['scc']))
    e(Ins('s_cbranch_scc1 R_exit', 'branch', ['scc']))
    e(Ins('s_load_dwordx2 s[4:5], s[0:1], 80', 'smem', [], regs(S(4, 2))))
    e(Ins('s_load_dwordx2 s[6:7], s[0:1], 96', 'smem', [], regs(S(6, 2))))
    e(salu('s_mul_i32', S(20), S(2), 5462))
    e(salu('s_lshr_b32', S(20), S(20), 16))
    e(salu('s_mul_i32', S(21), S(20), 12))
    e(salu('s_sub_u32', S(21), S(2), S(21)))
    e(salu('s_mul_i32', S(26), S(21), 11))
    e(salu('s_lshr_b32', S(26), S(26), 5))
    e(salu('s_mul_i32', S(27), S(26), 3))
    e(salu('s_sub_u32', S(27), S(21), S(27)))
    e(valu('v_lshlrev_b32', V(3), 4, V(0)))
    e(salu('s_mul_i32', S(23), S(20), 8 * 49152))
    e(salu('s_mul_i32', S(28), S(26), 12288))
    e(salu('s_add_u32', S(23), S(23), S(28)))
    e(salu('s_lshl_b32', S(28), S(27), 12))
    e(salu('s_add_u32', S(23), S(23), S(28)))
    e(valu('v_and_b32', V(1), 15, V(0)))
    e(valu('v_bfe_u32', V(2), V(0), 4, 2))
    e(valu('v_lshlrev_b32', V(2), 6, V(2)))
    e(valu('v_lshl_add_u32', V(4), V(1), 11, V(2)))
    e(valu('v_lshrrev_b32', V(2), 6, V(0)))
    e(valu('v_lshl_add_u32', V(4), V(2), 4, V(4)))
    e(salu('s_and_b32', S(24), S(20), 15))
    e(salu('s_mul_i32', S(24), S(24), 48 * 2048))
    e(salu('s_lshr_b32', S(25), S(20), 4))
    e(salu('s_lshl_b32', S(25), S(25), 10))
    e(salu('s_add_u32', S(24), S(24), S(25)))
    e(salu('s_lshl_b32', S(25), S(27), 15))
    e(salu('s_add_u32', S(24), S(24), S(25)))
    e(salu('s_lshl_b32', S(25), S(26), 8))
    e(salu('s_add_u32', S(24), S(24), S(25)))
    e(Ins('s_waitcnt lgkmcnt(0)', 'other'))
    e(salu('s_mov_b64', S(8, 2), S(4, 2)))
    e(salu('s_mov_b32', S(10), 16 * 48 * 1024 * 2))
    e(salu('s_mov_b32', S(11), 0x20000))
    e(salu('s_mov_b64', S(12, 2), S(6, 2)))
    e(salu('s_mov_b32', S(14), 32 * 8 * 48 * 1024))
    e(salu('s_mov_b32', S(15), 0x20000))
    B0 = 8
    for hh in range(8):
        if hh:
            e(salu('s_add_u32', S(23), S(23), 49152))
        e(buf_load(V(B0 + hh * 4, 4), V(3), S(12, 4), S(23), flags=os.environ.get('RLDFLAGS', '')))
    AC = B0 + 32
    e(salu('s_mov_b32', S(30), 0xffff0000))
    for hh in range(8):
        for i in range(4):
            src = V(B0 + hh * 4 + i)
            lo, hi = V(AC + 2 * i), V(AC + 2 * i + 1)
            if hh == 0:
                e(valu('v_lshlrev_b32', lo, 16, src))
                e(valu('v_and_b32', hi, S(30), src))
            else:
                t0, t1 = V(AC + 8 + (i & 1) * 2), V(AC + 9 + (i & 1) * 2)
                e(valu('v_lshlrev_b32', t0, 16, src))
                e(valu('v_and_b32', t1, S(30), src))
                e(valu('v_add_f32', lo, lo, t0))
                e(valu('v_add_f32', hi, hi, t1))
    for p in range(4):
        e(valu('v_cvt_pk_bf16_f32', V(B0 + p), V(AC + 2 * p), V(AC + 2 * p + 1)))
    e(buf_store(V(B0, 4), V(4), S(8, 4), S(24)))
    e(Ins('R_exit:', 'label'))
    e(Ins('s_endpgm', 'other'))
    lines, stats = finalize(L)
    return lines


def kd(name, vgpr, accum, sgpr):
    return f""".amdhsa_kernel {name}
  .amdhsa_next_free_vgpr {vgpr}
  .amdhsa_next_free_sgpr {sgpr}
  .amdhsa_accum_offset {accum}
  .amdhsa_group_segment_fixed_size 0
  .amdhsa_kernarg_size 104
  .amdhsa_user_sgpr_count 2
  .amdhsa_user_sgpr_kernarg_segment_ptr 1
  .amdhsa_system_sgpr_workgroup_id_x 1
.end_amdhsa_kernel
"""


for wg in range(384 + 16):
    assert (wg * 5462) >> 16 == wg // 12
for i in range(48):
    assert (i * 43) >> 7 == i // 3
for rq in range(12):
    assert (rq * 11) >> 5 == rq // 3

main = build_main()
red = build_reduce()
txt = HDR
txt += f'; @launch kernel={NAME}_kernel grid=(256,1,1) block=(256,1,1) lds=163840\n'
txt += '; @launch kernel=reduce_kernel grid=(384,1,1) block=(256,1,1) lds=0\n'
txt += '.amdgcn_target "amdgcn-amd-amdhsa--gfx950"\n.text\n'
txt += f'.globl {NAME}_kernel\n.p2align 8\n.type {NAME}_kernel,@function\n{NAME}_kernel:\n'
txt += '\n'.join(main) + '\n'
txt += '.globl reduce_kernel\n.p2align 8\n.type reduce_kernel,@function\nreduce_kernel:\n'
txt += '\n'.join(red) + '\n'
txt += '.section .rodata,"a"\n.p2align 6\n'
txt += kd(f'{NAME}_kernel', 512, 256, 96)
txt += '.p2align 6\n'
txt += kd('reduce_kernel', 56, 56, 32)
open(OUT, 'w').write(txt)
print('wrote', OUT, len(txt), file=sys.stderr)
```

```python
import sys
import struct
from asmlib import *
import os
KVFLAGS = os.environ.get('KVFLAGS', 'nt')
WFLAGS = os.environ.get('WFLAGS', '')

NAME = 'concat_heads__gqa_block_cached__gqa_block_cached__near_ridge'
OUT = sys.argv[1] if len(sys.argv) > 1 else f'cdna_kernels/{NAME}.s'

HDR = open(f'cdna_kernels/{NAME}.s.ref').read().split('; Override launch')[0]


def f32bits(x):
    return struct.unpack('<I', struct.pack('<f', x))[0]


CSCALE = f32bits(1.4426950408889634 / (128.0 ** 0.5))
THRESH = f32bits(16.0)

sPTR = 16
SRD_X, SRD_K, SRD_V, SRD_WQ, SRD_WO, SRD_WS = S(44, 4), S(48, 4), S(52, 4), S(56, 4), S(60, 4), S(64, 4)
sH, sB, sBLK, sW = S(70), S(71), S(72), S(73)
sX = [S(74), S(75), S(76)]
sWOFF = S(77)
sKV = S(78)
sT0, sT1 = S(79), S(80)
sSELLO, sSELHI = S(82), S(83)
sLDSW = S(84)
sOUT = S(85)
sC = S(86)
sTH = S(87)
sWBASE = S(88)
sKK = S(89)
sT2 = S(92)

vJ, vG = V(1), V(2)
vOFFWQ0 = V(3)
vBF = V(4)
vBB = V(5)
vBA = [V(6), V(7)]
vOFFK = [V(12 + i) for i in range(4)]
vOFFV = [V(16 + i) for i in range(2)]
vKB = [V(18 + s) for s in range(4)]
vVB = [V(22 + d) for d in range(8)]
vOFFWO = [V(30), V(31)]
TR = 32
RAW = 64
NB = 6
NEGM = 32
ONES = V(44, 4)
vKA = [V(48 + s) for s in range(4)]
vVA = [V(52 + d) for d in range(8)]
vTMP = [V(60 + i) for i in range(4)]
SB = [64, 112]
QF = 160
PF = 224
vT = [V(248 + i) for i in range(8)]
ACC = 0
XB = 96
OACC = 0
LACC = 96
KF = 128
VF = 192


def acc(t, mt):
    return A(ACC + (t * 3 + mt) * 4, 4)


def tr(t):
    return V(TR + t * 4, 4)


def raw(buf, e):
    return V(RAW + buf * 32 + e * 4, 4)


def xf(ks, mt):
    return A(XB + ((ks % 3) * 3 + mt) * 4, 4)


def sreg(par, kt, qt):
    return V(SB[par] + (kt * 3 + qt) * 4, 4)


def qf(qt, s):
    return V(QF + (qt * 4 + s) * 4, 4)


def pf(ks, qt):
    return V(PF + (ks * 3 + qt) * 4, 4)


def negm(qt):
    return V(NEGM + qt * 4, 4)


def oacc(dt, qt):
    return A(OACC + (dt * 3 + qt) * 4, 4)


def lacc(qt):
    return A(LACC + qt * 4, 4)


def kf(kt, s):
    return A(KF + (kt * 4 + s) * 4, 4)


def vf(dt, ks):
    return A(VF + (dt * 2 + ks) * 4, 4)


def perms(buf, t):
    o = []
    for p in range(4):
        lo = V(RAW + buf * 32 + (2 * p) * 4 + t // 2)
        hi = V(RAW + buf * 32 + (2 * p + 1) * 4 + t // 2)
        o.append(valu('v_perm_b32', V(TR + t * 4 + p), hi, lo, sSELHI if t & 1 else sSELLO))
    return o


def dma_unit(kind, c, i):
    slot = (c % 5) * 32768 + (16384 if kind == 'V' else 0)
    voff = vOFFK[i] if kind == 'K' else vOFFV[i & 1]
    return [salu('s_add_u32', 'm0', sLDSW, slot),
            salu('s_add_u32', sT0, sKV, c * 16384),
            dma(voff, SRD_K if kind == 'K' else SRD_V, sT0, i * 1024, tag=f'{kind}{c}', flags=KVFLAGS)]


class DmaQ:
    def __init__(self):
        self.units = [(kind, c, i) for c in range(8) for kind in 'KV' for i in range(4)]
        self.pos = 0
        self.limit = 0

    def allow(self, n):
        self.limit = max(self.limit, n)

    def pop(self, n=1):
        o = []
        while n > 0 and self.pos < min(self.limit, len(self.units)):
            o += dma_unit(*self.units[self.pos])
            self.pos += 1
            n -= 1
        return o

    def ensure(self, n):
        return self.pop(max(0, n - self.pos))


def sprinkle(stream, q, every, first=0):
    out = []
    k = -first
    for I in stream:
        out.append(I)
        if I.kind == 'mfma':
            k += 1
            if k > 0 and k % every == 0:
                out += q.pop(1)
    return out


def gemm_phase(L, is_q, bfrag, extra=None):
    def wloads(ks):
        o = []
        buf = (ks + (0 if is_q else 3)) % NB
        o.append(salu('s_add_u32', sKK, sB, ks))
        o.append(salu('s_and_b32', sKK, sKK, 15))
        o.append(salu('s_lshl_b32', sKK, sKK, 18 if is_q else 15))
        o.append(salu('s_add_u32', sWOFF, sWBASE, sKK))
        if is_q:
            for e in range(8):
                if e:
                    o.append(salu('s_add_u32', sWOFF, sWOFF, 8192))
                o.append(buf_load(raw(buf, e), vOFFWQ0, SRD_WQ, sWOFF, flags=WFLAGS))
        else:
            for e in range(8):
                o.append(buf_load(raw(buf, e), vOFFWO[e >> 2], SRD_WO, sWOFF, (e & 3) * 1024, flags=WFLAGS))
        return o

    def xloads(ks):
        return []

    return wloads, xloads


STAMP = int(os.environ.get('STAMP', '0'))
STREGS = [3, 4, 5, 6, 7, 8, 9, 10, 11, 12, 13, 14, 15, 42, 43, 68]


def build_main():
    L = []
    e = L.append
    ex = L.extend
    slow_paths = []
    nst = [0]

    def stamp():
        if not STAMP:
            return
        e(wait_all(vm=False, lgkm=True))
        e(Ins('s_memtime s[90:91]', 'smem', [], ['s90', 's91']))
        e(Ins('s_waitcnt lgkmcnt(0)', 'other'))
        e(salu('s_mov_b32', S(STREGS[nst[0]]), S(90)))
        nst[0] += 1

    e(Ins('s_cmp_ge_u32 s2, 256', 'salu', ['s2'], ['scc']))
    e(Ins('s_cbranch_scc1 L_exit', 'branch', ['scc']))
    e(Ins('s_load_dwordx16 s[16:31], s[0:1], 0', 'smem', [], regs(S(16, 16))))
    e(Ins('s_load_dwordx8 s[32:39], s[0:1], 64', 'smem', [], regs(S(32, 8))))
    e(Ins('s_load_dwordx2 s[40:41], s[0:1], 96', 'smem', [], regs(S(40, 2))))
    if os.environ.get('MAP', '1') == '1':
        e(salu('s_bfe_u32', sBLK, S(2), 0x10002))
        e(salu('s_and_b32', sH, S(2), 3))
        e(salu('s_lshl_b32', sH, sH, 1))
        e(salu('s_bfe_u32', sT0, S(2), 0x10003))
        e(salu('s_or_b32', sH, sH, sT0))
        e(salu('s_lshr_b32', sB, S(2), 4))
    else:
        e(salu('s_and_b32', sH, S(2), 7))
        e(salu('s_lshr_b32', sT0, S(2), 3))
        e(salu('s_and_b32', sB, sT0, 15))
        e(salu('s_lshr_b32', sBLK, sT0, 4))
    e(valu('v_lshrrev_b32', vT[0], 6, V(0)))
    e(valu('v_readfirstlane_b32', sW, vT[0]))
    e(valu('v_and_b32', vJ, 15, V(0)))
    e(valu('v_bfe_u32', vG, V(0), 4, 2))
    e(salu('s_mov_b32', sSELLO, 0x05040100))
    e(salu('s_mov_b32', sSELHI, 0x07060302))
    e(salu('s_mov_b32', sC, CSCALE))
    e(salu('s_mov_b32', sTH, THRESH))
    e(valu('v_lshlrev_b32', vT[0], 4, vJ))
    e(valu('v_lshl_add_u32', vOFFWQ0, vG, 16, vT[0]))
    e(valu('v_add_u32', vBF, 4, vJ))
    e(valu('v_and_b32', vBF, 15, vBF))
    e(valu('v_lshlrev_b32', vBB, 10, vJ))
    e(valu('v_lshl_add_u32', vOFFWO[0], vG, 13, vT[0]))
    e(valu('v_add_u32', vOFFWO[1], 4096, vOFFWO[0]))
    for i in range(4):
        e(valu('v_add_u32', vT[1], 4 * i + 4, vG))
        e(valu('v_and_b32', vT[1], 15, vT[1]))
        e(valu('v_xor_b32', vT[1], vT[1], vJ))
        e(valu('v_lshlrev_b32', vT[1], 4, vT[1]))
        e(valu('v_lshl_add_u32', vOFFK[i], vG, 8, vT[1]))
    for i in range(2):
        e(valu('v_add_u32', vT[1], 4 * i, vG))
        e(valu('v_lshlrev_b32', vT[1], 1, vT[1]))
        e(valu('v_xor_b32', vT[1], vT[1], vJ))
        e(valu('v_lshlrev_b32', vT[1], 4, vT[1]))
        e(valu('v_lshl_add_u32', vOFFV[i], vG, 8, vT[1]))
    e(valu('v_add_u32', vT[2], 4, vJ))
    e(valu('v_and_b32', vT[2], 15, vT[2]))
    for s in range(4):
        e(valu('v_lshl_add_u32', vT[1], vG, 2, s))
        e(valu('v_xor_b32', vT[1], vT[1], vT[2]))
        e(valu('v_lshlrev_b32', vT[1], 4, vT[1]))
        e(valu('v_lshl_add_u32', vKB[s], vJ, 8, vT[1]))
    e(valu('v_lshrrev_b32', vT[3], 2, vJ))
    e(valu('v_lshl_add_u32', vT[4], vG, 2, vT[3]))
    e(valu('v_and_b32', vT[5], 7, vT[4]))
    e(valu('v_and_b32', vT[6], 3, vJ))
    e(valu('v_lshlrev_b32', vT[6], 3, vT[6]))
    e(valu('v_lshl_add_u32', vT[6], vT[4], 8, vT[6]))
    for dt in range(8):
        e(valu('v_xor_b32', vT[1], dt, vT[5]))
        e(valu('v_lshl_add_u32', vVB[dt], vT[1], 5, vT[6]))
    e(Ins('s_waitcnt lgkmcnt(0)', 'other'))
    e(Ins(f's_cmp_eq_u32 {fmt(sBLK)}, 0', 'salu', regs(sBLK), ['scc']))
    for srd, pa, size in ((SRD_X, 16, 786432), (SRD_K, 18, 16777216), (SRD_V, 20, 16777216),
                          (SRD_WQ, 22, 4194304), (SRD_WO, 24, 4194304)):
        e(Ins(f's_cselect_b64 s[{srd[1]}:{srd[1] + 1}], s[{pa}:{pa + 1}], s[{pa + 10}:{pa + 11}]', 'salu',
              ['scc'] + regs(S(pa, 2)) + regs(S(pa + 10, 2)), regs(S(srd[1], 2))))
        e(salu('s_mov_b32', S(srd[1] + 2), size))
        e(salu('s_mov_b32', S(srd[1] + 3), 0x20000))
    e(salu('s_mov_b64', S(SRD_WS[1], 2), S(40, 2)))
    e(salu('s_mov_b32', S(SRD_WS[1] + 2), 32 * 8 * 48 * 1024))
    e(salu('s_mov_b32', S(SRD_WS[1] + 3), 0x20000))
    e(salu('s_mul_i32', sX[0], sB, 49152))
    e(salu('s_add_u32', sX[1], sX[0], 16384))
    e(salu('s_add_u32', sX[2], sX[0], 32768))
    e(salu('s_lshl_b32', sT0, sH, 2))
    e(salu('s_add_u32', sT0, sT0, sW))
    e(salu('s_lshl_b32', sWBASE, sT0, 8))
    e(salu('s_lshl_b32', sLDSW, sW, 12))
    e(salu('s_lshl_b32', sT0, sB, 3))
    e(salu('s_add_u32', sT0, sT0, sH))
    e(salu('s_lshl_b32', sKV, sT0, 17))
    e(salu('s_add_u32', sKV, sKV, sLDSW))
    e(salu('s_lshl_b32', sT1, sBLK, 7))
    e(salu('s_add_u32', sT0, sT0, sT1))
    e(salu('s_mul_i32', sOUT, sT0, 48 * 1024))
    e(salu('s_mul_i32', sT1, sW, 12288))
    e(salu('s_add_u32', sOUT, sOUT, sT1))

    XREG = 112 * 1024
    vXA = V(8)
    vXS = V(9)
    Q = DmaQ()

    def bfrag_reads(region, ks):
        o = []
        if region == XREG:
            if ks >= 4 and ks % 4 == 0:
                o.append(wait_vm_tag(f'X{ks // 4}'))
                o.append(barrier())
            for mt in range(3):
                o.append(ds_read('ds_read_b128', xf(ks, mt), vXA, (ks * 3 + mt) * 1024))
            return o
        o.append(salu('s_add_u32', sKK, sB, ks))
        o.append(salu('s_and_b32', sT2, sKK, 3))
        o.append(salu('s_lshl_b32', sT2, sT2, 2))
        o.append(salu('s_bfe_u32', sKK, sKK, 0x20002))
        o.append(salu('s_lshl_b32', sKK, sKK, 8))
        o.append(salu('s_add_u32', sKK, sKK, region))
        ad = vBA[ks & 1]
        o.append(valu('v_add_u32', ad, sT2, vG))
        o.append(valu('v_xor_b32', ad, ad, vBF))
        o.append(valu('v_lshl_add_u32', ad, ad, 4, vBB))
        o.append(valu('v_add_u32', ad, sKK, ad))
        for mt in range(3):
            o.append(ds_read('ds_read_b128', xf(ks, mt), ad, mt * 16384))
        return o

    def gemm(is_q, region, extra, pre_issued=0, ramp=False):
        wloads, _ = gemm_phase(L, is_q, None)
        nxt = pre_issued
        if not ramp:
            while nxt < NB:
                ex(wloads(nxt))
                nxt += 1
        ex(bfrag_reads(region, 0))
        ex(bfrag_reads(region, 1))
        boff = 0 if is_q else 3
        for t in range(8):
            ex(perms(boff, t))
        ex(wloads(nxt))
        nxt += 1
        for ks in range(16):
            if STAMP == 2 and ks % 4 == 0:
                stamp()
            if ks + 2 < 16:
                ex(bfrag_reads(region, ks + 2))
            for t in range(8):
                for mt in range(3):
                    e(mfma(acc(t, mt), tr(t), xf(ks, mt), acc(t, mt) if ks else 0))
                if ks + 1 < 16:
                    ex(perms((ks + 1 + boff) % NB, t))
                if t == 3 and nxt < 16 and nxt < ks + NB:
                    ex(wloads(nxt))
                    nxt += 1
            if nxt < 16 and nxt <= ks + 1 + NB:
                ex(wloads(nxt))
                nxt += 1
            if extra and ks in extra:
                ex(extra[ks]())

    L.append(Ins('; ======== phase 1: Q projection', 'comment'))
    stamp()
    e(valu('v_and_b32', V(32), 63, V(0)))
    e(valu('v_lshrrev_b32', V(33), 2, V(32)))
    e(valu('v_and_b32', V(34), 3, V(32)))
    e(valu('v_lshlrev_b32', V(34), 4, V(34)))
    e(valu('v_lshl_add_u32', vXS, V(33), 10, V(34)))
    e(valu('v_lshlrev_b32', V(34), 4, vG))
    e(valu('v_lshl_add_u32', vXA, vJ, 6, V(34)))
    e(valu('v_add_u32', vXA, XREG, vXA))

    def xdma(n):
        o = []
        o.append(salu('s_add_u32', sT0, sW, 4 * n))
        o.append(salu('s_mul_i32', sT1, sT0, 43))
        o.append(salu('s_lshr_b32', sT1, sT1, 7))
        o.append(salu('s_mul_i32', sT2, sT1, 3))
        o.append(salu('s_sub_u32', sT2, sT0, sT2))
        o.append(salu('s_lshl_b32', sT0, sT0, 10))
        o.append(salu('s_add_u32', 'm0', sT0, XREG))
        o.append(salu('s_add_u32', sT1, sT1, sB))
        o.append(salu('s_and_b32', sT1, sT1, 15))
        o.append(salu('s_lshl_b32', sT1, sT1, 6))
        o.append(salu('s_lshl_b32', sT2, sT2, 14))
        o.append(salu('s_add_u32', sT1, sT1, sT2))
        o.append(salu('s_add_u32', sT1, sT1, sX[0]))
        o.append(dma(vXS, SRD_X, sT1, 0, tag=f'X{n // 3}'))
        return o
    wl1, _ = gemm_phase(L, True, None)
    for n in range(3):
        ex(xdma(n))
    ex(wl1(0))
    for n in range(3, 12):
        ex(xdma(n))
    ex(wl1(1))
    e(wait_vm_tag('X0'))
    e(barrier())
    if STAMP == 2:
        stamp()
    Q.allow(28)
    P1START = int(os.environ.get('P1START', '2'))
    P1PER = int(os.environ.get('P1PER', '0'))
    P1LATE = int(os.environ.get('P1LATE', '4'))
    P1LS = int(os.environ.get('P1LS', '9'))
    extra = {ks: (lambda n=(P1LATE if ks >= P1LS else P1PER): Q.pop(n)) for ks in range(P1START, 16)}
    gemm(True, XREG, extra, pre_issued=2, ramp=True)

    stamp()
    L.append(Ins('; ======== Q fragments', 'comment'))
    n = 0
    for qt in range(3):
        for s in range(4):
            for p in range(4):
                a0 = V(208 + (n % 8) * 2)
                a1 = V(209 + (n % 8) * 2)
                n += 1
                e(valu('v_accvgpr_read_b32', a0, A(acc(2 * p, qt)[1] + s)))
                e(valu('v_accvgpr_read_b32', a1, A(acc(2 * p + 1, qt)[1] + s)))
                e(valu('v_mul_f32', a0, sC, a0))
                e(valu('v_mul_f32', a1, sC, a1))
                e(valu('v_cvt_pk_bf16_f32', V(qf(qt, s)[1] + p), a0, a1))
    for r in range(4):
        e(valu('v_mov_b32', V(ONES[1] + r), 0x3f803f80))

    def kaddr(c):
        return [valu('v_add_u32', vKA[s], (c % 5) * 32768, vKB[s]) for s in range(4)]

    def vaddr(c):
        return [valu('v_add_u32', vVA[d], (c % 5) * 32768 + 16384, vVB[d]) for d in range(8)]

    def kreads():
        return [ds_read('ds_read_b128', kf(kt, s), vKA[s], kt * 4096) for kt in range(4) for s in range(4)]

    def vreads():
        o = []
        for ks in range(2):
            for dt in range(8):
                for hf in range(2):
                    o.append(ds_read('ds_read_b64_tr_b16', A(vf(dt, ks)[1] + 2 * hf, 2), vVA[dt], ks * 8192 + hf * 4096))
        return o

    def qk_mfmas(par, first):
        o = []
        for kt in range(4):
            for s in range(4):
                for qt in range(3):
                    C = sreg(par, kt, qt) if s else (0 if first else negm(qt))
                    o.append(mfma(sreg(par, kt, qt), kf(kt, s), qf(qt, s), C))
        return o

    def exp_ops(par):
        o = []
        for kt in range(4):
            for qt in range(3):
                b = sreg(par, kt, qt)[1]
                for r in range(4):
                    o.append(valu('v_exp_f32', V(b + r), V(b + r)))
                pb = pf(kt // 2, qt)[1] + (kt & 1) * 2
                o.append(valu('v_cvt_pk_bf16_f32', V(pb), V(b), V(b + 1)))
                o.append(valu('v_cvt_pk_bf16_f32', V(pb + 1), V(b + 2), V(b + 3)))
        return o

    def pv_mfmas(first=False):
        o = []
        for ks in range(2):
            z = first and ks == 0
            for dt in range(8):
                for qt in range(3):
                    o.append(mfma(oacc(dt, qt), vf(dt, ks), pf(ks, qt), 0 if z else oacc(dt, qt)))
            for qt in range(3):
                o.append(mfma(lacc(qt), ONES, pf(ks, qt), 0 if z else lacc(qt)))
        return o

    def max_all(par):
        o = []
        b = SB[par]
        o.append(valu('v_max3_f32', vTMP[0], V(b), V(b + 1), V(b + 2)))
        for i in range(3, 47, 2):
            o.append(valu('v_max3_f32', vTMP[0], vTMP[0], V(b + i), V(b + i + 1)))
        o.append(valu('v_max_f32', vTMP[0], vTMP[0], V(b + 47)))
        return o

    def rebase(par, first):
        o = []
        o.append(valu('v_and_b32', vT[6], 63, V(0)))
        o.append(valu('v_xor_b32', vT[4], 16, vT[6]))
        o.append(valu('v_lshlrev_b32', vT[4], 2, vT[4]))
        o.append(valu('v_xor_b32', vT[5], 32, vT[6]))
        o.append(valu('v_lshlrev_b32', vT[5], 2, vT[5]))
        for qt in range(3):
            m = vT[qt]
            vals = [V(sreg(par, kt, qt)[1] + r) for kt in range(4) for r in range(4)]
            o.append(valu('v_max3_f32', m, vals[0], vals[1], vals[2]))
            for i in range(3, 15, 2):
                o.append(valu('v_max3_f32', m, m, vals[i], vals[i + 1]))
            o.append(valu('v_max_f32', m, m, vals[15]))
            o.append(ds_bperm(vT[7], vT[4], m))
            o.append(valu('v_max_f32', m, m, vT[7]))
            o.append(ds_bperm(vT[7], vT[5], m))
            o.append(valu('v_max_f32', m, m, vT[7]))
            if not first:
                o.append(valu('v_max_f32', m, 0, m))
            for v in vals:
                o.append(valu('v_sub_f32', v, v, m))
            if first:
                for r in range(4):
                    o.append(valu('v_sub_f32', V(negm(qt)[1] + r), 0, m))
            else:
                for r in range(4):
                    o.append(valu('v_sub_f32', V(negm(qt)[1] + r), V(negm(qt)[1] + r), m))
                o.append(valu('v_sub_f32', vT[7], 0, m))
                o.append(valu('v_exp_f32', vT[7], vT[7]))
                accs = [A(oacc(dt, qt)[1] + r) for dt in range(8) for r in range(4)] + [A(lacc(qt)[1] + r) for r in range(4)]
                for a_ in accs:
                    o.append(valu('v_accvgpr_read_b32', vT[6], a_))
                    o.append(valu('v_mul_f32', vT[6], vT[6], vT[7]))
                    o.append(valu('v_accvgpr_write_b32', a_, vT[6]))
        return o

    L.append(Ins('; ======== attention prologue', 'comment'))
    ex(kaddr(0))
    ex(Q.ensure(4))
    e(wait_vm_tag('K0'))
    e(wait_all(vm=False, lgkm=True))
    e(barrier())
    Q.allow(40)
    EV = int(os.environ.get('EV', '11'))
    ex(kreads())
    ex(sprinkle(qk_mfmas(0, True), Q, 8))
    ex(rebase(0, True))

    wl4 = None
    for c in range(8):
        par = c & 1
        if STAMP == 1 or c == 0:
            stamp()
        L.append(Ins(f'; ======== attention chunk {c}', 'comment'))
        ex(Q.ensure(min(64, 8 * c + 12)))
        if c < 7:
            ex(kaddr(c + 1))
            e(wait_vm_tag(f'K{c + 1}'))
        ex(vaddr(c))
        e(wait_vm_tag(f'V{c}'))
        e(wait_all(vm=False, lgkm=True))
        e(barrier())
        Q.allow(8 * (c + 5))
        body0 = len(L)
        pv = pv_mfmas(c == 0)
        eo = exp_ops(par)
        vr = vreads()
        if c < 7:
            kr = kreads()
            qk = qk_mfmas(par ^ 1, False)
            mx = max_all(par ^ 1)
            ex(kr[:6])
            ex(interleave(qk[:24], kr[6:] + interleave(eo[:36], vr[:16])))
            ex(interleave(pv[:27], eo[36:]))
            ex(interleave(qk[24:], interleave(vr[16:], mx[:11])))
        else:
            ex(interleave(eo[:36], vr[:16]))
            ex(interleave(pv[:27], interleave(eo[36:], vr[16:])))
        if c == 6:
            e(salu('s_lshl_b32', sT0, sH, 19))
            e(salu('s_lshl_b32', sT1, sW, 8))
            e(salu('s_add_u32', sWBASE, sT0, sT1))
            wl4, _ = gemm_phase(L, False, None)
            ex(wl4(0))
            ex(wl4(1))
        if c < 7:
            ex(interleave(pv[27:], mx[11:], start=6))
            L[body0:] = sprinkle(L[body0:], Q, EV)
            e(Ins(f"v_cmp_lt_f32 vcc, {fmt(sTH)}, {fmt(vTMP[0])}", 'valu', regs(vTMP[0]) + regs(sTH), ['vcc'], {'op': 'v_cmp'}))
            e(nop(3))
            e(Ins(f's_cbranch_vccnz L_slow{c}', 'branch', ['vcc']))
            e(Ins(f'L_back{c}:', 'label'))
            sp = rebase(par ^ 1, False)
            sp.append(nop(7))
            sp.append(nop(7))
            sp.append(Ins(f's_branch L_back{c}', 'branch'))
            slow_paths.append((f'L_slow{c}', sp))
        else:
            ex(pv[27:])

    stamp()
    L.append(Ins('; ======== O normalise -> LDS', 'comment'))
    ex(wl4(2))
    ex(wl4(3))
    ex(wl4(4))
    nT = [V(32 + i) for i in range(8)]
    e(valu('v_lshrrev_b32', nT[3], 1, vG))
    e(valu('v_and_b32', nT[4], 1, vG))
    e(valu('v_lshlrev_b32', nT[4], 3, nT[4]))
    e(valu('v_add_u32', nT[4], nT[4], vBB))
    e(salu('s_lshl_b32', sT0, sW, 8))
    e(valu('v_add_u32', nT[4], sT0, nT[4]))
    OW = [V(48 + d) for d in range(8)]
    for dt in range(8):
        e(valu('v_add_u32', nT[5], 2 * dt, nT[3]))
        e(valu('v_xor_b32', nT[5], nT[5], vBF))
        e(valu('v_lshl_add_u32', OW[dt], nT[5], 4, nT[4]))
    for qt in range(3):
        e(valu('v_accvgpr_read_b32', nT[6], A(lacc(qt)[1])))
        e(valu('v_rcp_f32', nT[6], nT[6]))
        for dt in range(8):
            b = 128 + ((qt * 8 + dt) % 5) * 6
            for r in range(4):
                e(valu('v_accvgpr_read_b32', V(b + r), A(oacc(dt, qt)[1] + r)))
                e(valu('v_mul_f32', V(b + r), V(b + r), nT[6]))
            e(valu('v_cvt_pk_bf16_f32', V(b + 4), V(b), V(b + 1)))
            e(valu('v_cvt_pk_bf16_f32', V(b + 5), V(b + 2), V(b + 3)))
            e(ds_write('ds_write_b64', OW[dt], V(b + 4, 2), qt * 16384))
    e(wait_all(vm=False, lgkm=True))
    e(barrier())
    stamp()
    L.append(Ins('; ======== phase 4: output projection', 'comment'))
    gemm(False, 0, None, pre_issued=5)

    stamp()
    L.append(Ins('; ======== store partials', 'comment'))
    e(valu('v_and_b32', vBA[0], 63, V(0)))
    e(valu('v_lshlrev_b32', vBA[0], 4, vBA[0]))
    for mt in range(3):
        for r in range(4):
            i = mt * 4 + r
            b = 64 + (i % 4) * 12
            for t in range(8):
                e(valu('v_accvgpr_read_b32', V(b + t), A(acc(t, mt)[1] + r)))
            for p in range(4):
                e(valu('v_cvt_pk_bf16_f32', V(b + 8 + p), V(b + 2 * p), V(b + 2 * p + 1)))
            if i and i % 4 == 0:
                e(salu('s_add_u32', sOUT, sOUT, 4096))
            e(buf_store(V(b + 8, 4), vBA[0], SRD_WS, sOUT, (i % 4) * 1024, flags=os.environ.get('PSTFLAGS', 'sc0 sc1')))
    if STAMP:
        e(wait_all())
        stamp()
        e(salu('s_mov_b32', S(SRD_WS[1] + 2), 0x10000000))
        e(salu('s_lshl_b32', sT0, S(2), 2))
        e(salu('s_add_u32', sT0, sT0, sW))
        e(salu('s_lshl_b32', sT0, sT0, 7))
        e(salu('s_add_u32', sT0, sT0, 64 << 20))
        e(valu('v_mov_b32', V(1), 0))
        e(valu('v_mov_b32', V(3), 0))
        for i in range(nst[0]):
            e(valu('v_mov_b32', V(2), S(STREGS[i])))
            e(buf_store(V(2, 2), V(1), SRD_WS, sT0, i * 8))
            e(wait_all())
    e(Ins('L_exit:', 'label'))
    e(Ins('s_endpgm', 'other'))
    lines, stats = finalize(L)
    print('main', stats, len(lines), file=sys.stderr)
    for name, sp in slow_paths:
        lines.append(name + ':')
        l2, _ = finalize(sp, entry_pad=True)
        lines += l2
    return lines


def build_reduce():
    L = []
    e = L.append
    e(Ins('s_cmp_ge_u32 s2, 384', 'salu', ['s2'], ['scc']))
    e(Ins('s_cbranch_scc1 R_exit', 'branch', ['scc']))
    e(Ins('s_load_dwordx2 s[4:5], s[0:1], 80', 'smem', [], regs(S(4, 2))))
    e(Ins('s_load_dwordx2 s[6:7], s[0:1], 96', 'smem', [], regs(S(6, 2))))
    e(salu('s_mul_i32', S(20), S(2), 5462))
    e(salu('s_lshr_b32', S(20), S(20), 16))
    e(salu('s_mul_i32', S(21), S(20), 12))
    e(salu('s_sub_u32', S(21), S(2), S(21)))
    e(salu('s_mul_i32', S(26), S(21), 11))
    e(salu('s_lshr_b32', S(26), S(26), 5))
    e(salu('s_mul_i32', S(27), S(26), 3))
    e(salu('s_sub_u32', S(27), S(21), S(27)))
    e(valu('v_lshlrev_b32', V(3), 4, V(0)))
    e(salu('s_mul_i32', S(23), S(20), 8 * 49152))
    e(salu('s_mul_i32', S(28), S(26), 12288))
    e(salu('s_add_u32', S(23), S(23), S(28)))
    e(salu('s_lshl_b32', S(28), S(27), 12))
    e(salu('s_add_u32', S(23), S(23), S(28)))
    e(valu('v_and_b32', V(1), 15, V(0)))
    e(valu('v_bfe_u32', V(2), V(0), 4, 2))
    e(valu('v_lshlrev_b32', V(2), 6, V(2)))
    e(valu('v_lshl_add_u32', V(4), V(1), 11, V(2)))
    e(valu('v_lshrrev_b32', V(2), 6, V(0)))
    e(valu('v_lshl_add_u32', V(4), V(2), 4, V(4)))
    e(salu('s_and_b32', S(24), S(20), 15))
    e(salu('s_mul_i32', S(24), S(24), 48 * 2048))
    e(salu('s_lshr_b32', S(25), S(20), 4))
    e(salu('s_lshl_b32', S(25), S(25), 10))
    e(salu('s_add_u32', S(24), S(24), S(25)))
    e(salu('s_lshl_b32', S(25), S(27), 15))
    e(salu('s_add_u32', S(24), S(24), S(25)))
    e(salu('s_lshl_b32', S(25), S(26), 8))
    e(salu('s_add_u32', S(24), S(24), S(25)))
    e(Ins('s_waitcnt lgkmcnt(0)', 'other'))
    e(salu('s_mov_b64', S(8, 2), S(4, 2)))
    e(salu('s_mov_b32', S(10), 16 * 48 * 1024 * 2))
    e(salu('s_mov_b32', S(11), 0x20000))
    e(salu('s_mov_b64', S(12, 2), S(6, 2)))
    e(salu('s_mov_b32', S(14), 32 * 8 * 48 * 1024))
    e(salu('s_mov_b32', S(15), 0x20000))
    B0 = 8
    for hh in range(8):
        if hh:
            e(salu('s_add_u32', S(23), S(23), 49152))
        e(buf_load(V(B0 + hh * 4, 4), V(3), S(12, 4), S(23), flags=os.environ.get('RLDFLAGS', '')))
    AC = B0 + 32
    e(salu('s_mov_b32', S(30), 0xffff0000))
    for hh in range(8):
        for i in range(4):
            src = V(B0 + hh * 4 + i)
            lo, hi = V(AC + 2 * i), V(AC + 2 * i + 1)
            if hh == 0:
                e(valu('v_lshlrev_b32', lo, 16, src))
                e(valu('v_and_b32', hi, S(30), src))
            else:
                t0, t1 = V(AC + 8 + (i & 1) * 2), V(AC + 9 + (i & 1) * 2)
                e(valu('v_lshlrev_b32', t0, 16, src))
                e(valu('v_and_b32', t1, S(30), src))
                e(valu('v_add_f32', lo, lo, t0))
                e(valu('v_add_f32', hi, hi, t1))
    for p in range(4):
        e(valu('v_cvt_pk_bf16_f32', V(B0 + p), V(AC + 2 * p), V(AC + 2 * p + 1)))
    e(buf_store(V(B0, 4), V(4), S(8, 4), S(24)))
    e(Ins('R_exit:', 'label'))
    e(Ins('s_endpgm', 'other'))
    lines, stats = finalize(L)
    return lines


def kd(name, vgpr, accum, sgpr):
    return f""".amdhsa_kernel {name}
  .amdhsa_next_free_vgpr {vgpr}
  .amdhsa_next_free_sgpr {sgpr}
  .amdhsa_accum_offset {accum}
  .amdhsa_group_segment_fixed_size 0
  .amdhsa_kernarg_size 104
  .amdhsa_user_sgpr_count 2
  .amdhsa_user_sgpr_kernarg_segment_ptr 1
  .amdhsa_system_sgpr_workgroup_id_x 1
.end_amdhsa_kernel
"""


for wg in range(384 + 16):
    assert (wg * 5462) >> 16 == wg // 12
for i in range(48):
    assert (i * 43) >> 7 == i // 3
for rq in range(12):
    assert (rq * 11) >> 5 == rq // 3

main = build_main()
red = build_reduce()
txt = HDR
txt += f'; @launch kernel={NAME}_kernel grid=(256,1,1) block=(256,1,1) lds=163840\n'
txt += '; @launch kernel=reduce_kernel grid=(384,1,1) block=(256,1,1) lds=0\n'
txt += '.amdgcn_target "amdgcn-amd-amdhsa--gfx950"\n.text\n'
txt += f'.globl {NAME}_kernel\n.p2align 8\n.type {NAME}_kernel,@function\n{NAME}_kernel:\n'
txt += '\n'.join(main) + '\n'
txt += '.globl reduce_kernel\n.p2align 8\n.type reduce_kernel,@function\nreduce_kernel:\n'
txt += '\n'.join(red) + '\n'
txt += '.section .rodata,"a"\n.p2align 6\n'
txt += kd(f'{NAME}_kernel', 512, 256, 96)
txt += '.p2align 6\n'
txt += kd('reduce_kernel', 56, 56, 32)
open(OUT, 'w').write(txt)
print('wrote', OUT, len(txt), file=sys.stderr)
```

```python
import sys
import struct
from asmlib import *
import os
KVFLAGS = os.environ.get('KVFLAGS', 'nt')
WFLAGS = os.environ.get('WFLAGS', '')

NAME = 'concat_heads__gqa_block_cached__gqa_block_cached__near_ridge'
OUT = sys.argv[1] if len(sys.argv) > 1 else f'cdna_kernels/{NAME}.s'

HDR = open(f'cdna_kernels/{NAME}.s.ref').read().split('; Override launch')[0]


def f32bits(x):
    return struct.unpack('<I', struct.pack('<f', x))[0]


CSCALE = f32bits(1.4426950408889634 / (128.0 ** 0.5))
THRESH = f32bits(16.0)

sPTR = 16
SRD_X, SRD_K, SRD_V, SRD_WQ, SRD_WO, SRD_WS = S(44, 4), S(48, 4), S(52, 4), S(56, 4), S(60, 4), S(64, 4)
sH, sB, sBLK, sW = S(70), S(71), S(72), S(73)
sX = [S(74), S(75), S(76)]
sWOFF = S(77)
sKV = S(78)
sT0, sT1 = S(79), S(80)
sSELLO, sSELHI = S(82), S(83)
sLDSW = S(84)
sOUT = S(85)
sC = S(86)
sTH = S(87)
sWBASE = S(88)
sKK = S(89)
sT2 = S(92)

vJ, vG = V(1), V(2)
vOFFWQ0 = V(3)
vBF = V(4)
vBB = V(5)
vBA = [V(6), V(7)]
vOFFK = [V(12 + i) for i in range(4)]
vOFFV = [V(16 + i) for i in range(2)]
vKB = [V(18 + s) for s in range(4)]
vVB = [V(22 + d) for d in range(8)]
vOFFWO = [V(30), V(31)]
TR = 32
RAW = 64
NB = 6
NEGM = 32
ONES = V(44, 4)
vKA = [V(48 + s) for s in range(4)]
vVA = [V(52 + d) for d in range(8)]
vTMP = [V(60 + i) for i in range(4)]
SB = [64, 112]
QF = 160
PF = 224
vT = [V(248 + i) for i in range(8)]
ACC = 0
XB = 96
OACC = 0
LACC = 96
KF = 128
VF = 192


def acc(t, mt):
    return A(ACC + (t * 3 + mt) * 4, 4)


def tr(t):
    return V(TR + t * 4, 4)


def raw(buf, e):
    return V(RAW + buf * 32 + e * 4, 4)


def xf(ks, mt):
    return A(XB + ((ks % 3) * 3 + mt) * 4, 4)


def sreg(par, kt, qt):
    return V(SB[par] + (kt * 3 + qt) * 4, 4)


def qf(qt, s):
    return V(QF + (qt * 4 + s) * 4, 4)


def pf(ks, qt):
    return V(PF + (ks * 3 + qt) * 4, 4)


def negm(qt):
    return V(NEGM + qt * 4, 4)


def oacc(dt, qt):
    return A(OACC + (dt * 3 + qt) * 4, 4)


def lacc(qt):
    return A(LACC + qt * 4, 4)


def kf(kt, s):
    return A(KF + (kt * 4 + s) * 4, 4)


def vf(dt, ks):
    return A(VF + (dt * 2 + ks) * 4, 4)


def perms(buf, t):
    o = []
    for p in range(4):
        lo = V(RAW + buf * 32 + (2 * p) * 4 + t // 2)
        hi = V(RAW + buf * 32 + (2 * p + 1) * 4 + t // 2)
        o.append(valu('v_perm_b32', V(TR + t * 4 + p), hi, lo, sSELHI if t & 1 else sSELLO))
    return o


def dma_unit(kind, c, i):
    slot = (c % 5) * 32768 + (16384 if kind == 'V' else 0)
    voff = vOFFK[i] if kind == 'K' else vOFFV[i & 1]
    return [salu('s_add_u32', 'm0', sLDSW, slot),
            salu('s_add_u32', sT0, sKV, c * 16384),
            dma(voff, SRD_K if kind == 'K' else SRD_V, sT0, i * 1024, tag=f'{kind}{c}', flags=KVFLAGS)]


class DmaQ:
    def __init__(self):
        self.units = [(kind, c, i) for c in range(8) for kind in 'KV' for i in range(4)]
        self.pos = 0
        self.limit = 0

    def allow(self, n):
        self.limit = max(self.limit, n)

    def pop(self, n=1):
        o = []
        while n > 0 and self.pos < min(self.limit, len(self.units)):
            o += dma_unit(*self.units[self.pos])
            self.pos += 1
            n -= 1
        return o

    def ensure(self, n):
        return self.pop(max(0, n - self.pos))


def sprinkle(stream, q, every, first=0):
    out = []
    k = -first
    for I in stream:
        out.append(I)
        if I.kind == 'mfma':
            k += 1
            if k > 0 and k % every == 0:
                out += q.pop(1)
    return out


def gemm_phase(L, is_q, bfrag, extra=None):
    def wloads(ks):
        o = []
        buf = (ks + (0 if is_q else 3)) % NB
        o.append(salu('s_add_u32', sKK, sB, ks))
        o.append(salu('s_and_b32', sKK, sKK, 15))
        o.append(salu('s_lshl_b32', sKK, sKK, 18 if is_q else 15))
        o.append(salu('s_add_u32', sWOFF, sWBASE, sKK))
        if is_q:
            for e in range(8):
                if e:
                    o.append(salu('s_add_u32', sWOFF, sWOFF, 8192))
                o.append(buf_load(raw(buf, e), vOFFWQ0, SRD_WQ, sWOFF, flags=WFLAGS))
        else:
            for e in range(8):
                o.append(buf_load(raw(buf, e), vOFFWO[e >> 2], SRD_WO, sWOFF, (e & 3) * 1024, flags=WFLAGS))
        return o

    def xloads(ks):
        return []

    return wloads, xloads


STAMP = int(os.environ.get('STAMP', '0'))
INK = int(os.environ.get('INK', '0'))
STREGS = [3, 4, 5, 6, 7, 8, 9, 10, 11, 12, 13, 14, 15, 42, 43, 68]


def build_main():
    L = []
    e = L.append
    ex = L.extend
    slow_paths = []
    nst = [0]

    def stamp():
        if not STAMP:
            return
        e(wait_all(vm=False, lgkm=True))
        e(Ins('s_memtime s[90:91]', 'smem', [], ['s90', 's91']))
        e(Ins('s_waitcnt lgkmcnt(0)', 'other'))
        e(salu('s_mov_b32', S(STREGS[nst[0]]), S(90)))
        nst[0] += 1

    e(Ins('s_cmp_ge_u32 s2, 256', 'salu', ['s2'], ['scc']))
    e(Ins('s_cbranch_scc1 L_exit', 'branch', ['scc']))
    e(Ins('s_load_dwordx16 s[16:31], s[0:1], 0', 'smem', [], regs(S(16, 16))))
    e(Ins('s_load_dwordx8 s[32:39], s[0:1], 64', 'smem', [], regs(S(32, 8))))
    e(Ins('s_load_dwordx2 s[40:41], s[0:1], 96', 'smem', [], regs(S(40, 2))))
    if os.environ.get('MAP', '1') == '1':
        e(salu('s_bfe_u32', sBLK, S(2), 0x10002))
        e(salu('s_and_b32', sH, S(2), 3))
        e(salu('s_lshl_b32', sH, sH, 1))
        e(salu('s_bfe_u32', sT0, S(2), 0x10003))
        e(salu('s_or_b32', sH, sH, sT0))
        e(salu('s_lshr_b32', sB, S(2), 4))
    else:
        e(salu('s_and_b32', sH, S(2), 7))
        e(salu('s_lshr_b32', sT0, S(2), 3))
        e(salu('s_and_b32', sB, sT0, 15))
        e(salu('s_lshr_b32', sBLK, sT0, 4))
    e(valu('v_lshrrev_b32', vT[0], 6, V(0)))
    e(valu('v_readfirstlane_b32', sW, vT[0]))
    e(valu('v_and_b32', vJ, 15, V(0)))
    e(valu('v_bfe_u32', vG, V(0), 4, 2))
    e(salu('s_mov_b32', sSELLO, 0x05040100))
    e(salu('s_mov_b32', sSELHI, 0x07060302))
    e(salu('s_mov_b32', sC, CSCALE))
    e(salu('s_mov_b32', sTH, THRESH))
    e(valu('v_lshlrev_b32', vT[0], 4, vJ))
    e(valu('v_lshl_add_u32', vOFFWQ0, vG, 16, vT[0]))
    e(valu('v_add_u32', vBF, 4, vJ))
    e(valu('v_and_b32', vBF, 15, vBF))
    e(valu('v_lshlrev_b32', vBB, 10, vJ))
    e(valu('v_lshl_add_u32', vOFFWO[0], vG, 13, vT[0]))
    e(valu('v_add_u32', vOFFWO[1], 4096, vOFFWO[0]))
    for i in range(4):
        e(valu('v_add_u32', vT[1], 4 * i + 4, vG))
        e(valu('v_and_b32', vT[1], 15, vT[1]))
        e(valu('v_xor_b32', vT[1], vT[1], vJ))
        e(valu('v_lshlrev_b32', vT[1], 4, vT[1]))
        e(valu('v_lshl_add_u32', vOFFK[i], vG, 8, vT[1]))
    for i in range(2):
        e(valu('v_add_u32', vT[1], 4 * i, vG))
        e(valu('v_lshlrev_b32', vT[1], 1, vT[1]))
        e(valu('v_xor_b32', vT[1], vT[1], vJ))
        e(valu('v_lshlrev_b32', vT[1], 4, vT[1]))
        e(valu('v_lshl_add_u32', vOFFV[i], vG, 8, vT[1]))
    e(valu('v_add_u32', vT[2], 4, vJ))
    e(valu('v_and_b32', vT[2], 15, vT[2]))
    for s in range(4):
        e(valu('v_lshl_add_u32', vT[1], vG, 2, s))
        e(valu('v_xor_b32', vT[1], vT[1], vT[2]))
        e(valu('v_lshlrev_b32', vT[1], 4, vT[1]))
        e(valu('v_lshl_add_u32', vKB[s], vJ, 8, vT[1]))
    e(valu('v_lshrrev_b32', vT[3], 2, vJ))
    e(valu('v_lshl_add_u32', vT[4], vG, 2, vT[3]))
    e(valu('v_and_b32', vT[5], 7, vT[4]))
    e(valu('v_and_b32', vT[6], 3, vJ))
    e(valu('v_lshlrev_b32', vT[6], 3, vT[6]))
    e(valu('v_lshl_add_u32', vT[6], vT[4], 8, vT[6]))
    for dt in range(8):
        e(valu('v_xor_b32', vT[1], dt, vT[5]))
        e(valu('v_lshl_add_u32', vVB[dt], vT[1], 5, vT[6]))
    e(Ins('s_waitcnt lgkmcnt(0)', 'other'))
    e(Ins(f's_cmp_eq_u32 {fmt(sBLK)}, 0', 'salu', regs(sBLK), ['scc']))
    for srd, pa, size in ((SRD_X, 16, 786432), (SRD_K, 18, 16777216), (SRD_V, 20, 16777216),
                          (SRD_WQ, 22, 4194304), (SRD_WO, 24, 4194304)):
        e(Ins(f's_cselect_b64 s[{srd[1]}:{srd[1] + 1}], s[{pa}:{pa + 1}], s[{pa + 10}:{pa + 11}]', 'salu',
              ['scc'] + regs(S(pa, 2)) + regs(S(pa + 10, 2)), regs(S(srd[1], 2))))
        e(salu('s_mov_b32', S(srd[1] + 2), size))
        e(salu('s_mov_b32', S(srd[1] + 3), 0x20000))
    e(salu('s_mov_b64', S(SRD_WS[1], 2), S(40, 2)))
    e(salu('s_mov_b32', S(SRD_WS[1] + 2), 32 * 8 * 48 * 1024))
    e(salu('s_mov_b32', S(SRD_WS[1] + 3), 0x20000))
    e(salu('s_mul_i32', sX[0], sB, 49152))
    e(salu('s_add_u32', sX[1], sX[0], 16384))
    e(salu('s_add_u32', sX[2], sX[0], 32768))
    e(salu('s_lshl_b32', sT0, sH, 2))
    e(salu('s_add_u32', sT0, sT0, sW))
    e(salu('s_lshl_b32', sWBASE, sT0, 8))
    e(salu('s_lshl_b32', sLDSW, sW, 12))
    e(salu('s_lshl_b32', sT0, sB, 3))
    e(salu('s_add_u32', sT0, sT0, sH))
    e(salu('s_lshl_b32', sKV, sT0, 17))
    e(salu('s_add_u32', sKV, sKV, sLDSW))
    e(salu('s_lshl_b32', sT1, sBLK, 7))
    e(salu('s_add_u32', sT0, sT0, sT1))
    e(salu('s_mul_i32', sOUT, sT0, 48 * 1024))
    e(salu('s_mul_i32', sT1, sW, 12288))
    e(salu('s_add_u32', sOUT, sOUT, sT1))

    XREG = 112 * 1024
    vXA = V(8)
    vXS = V(9)
    Q = DmaQ()

    def bfrag_reads(region, ks):
        o = []
        if region == XREG:
            if ks >= 4 and ks % 4 == 0:
                o.append(wait_vm_tag(f'X{ks // 4}'))
                o.append(barrier())
            for mt in range(3):
                o.append(ds_read('ds_read_b128', xf(ks, mt), vXA, (ks * 3 + mt) * 1024))
            return o
        o.append(salu('s_add_u32', sKK, sB, ks))
        o.append(salu('s_and_b32', sT2, sKK, 3))
        o.append(salu('s_lshl_b32', sT2, sT2, 2))
        o.append(salu('s_bfe_u32', sKK, sKK, 0x20002))
        o.append(salu('s_lshl_b32', sKK, sKK, 8))
        o.append(salu('s_add_u32', sKK, sKK, region))
        ad = vBA[ks & 1]
        o.append(valu('v_add_u32', ad, sT2, vG))
        o.append(valu('v_xor_b32', ad, ad, vBF))
        o.append(valu('v_lshl_add_u32', ad, ad, 4, vBB))
        o.append(valu('v_add_u32', ad, sKK, ad))
        for mt in range(3):
            o.append(ds_read('ds_read_b128', xf(ks, mt), ad, mt * 16384))
        return o

    def gemm(is_q, region, extra, pre_issued=0, ramp=False):
        wloads, _ = gemm_phase(L, is_q, None)
        nxt = pre_issued
        if not ramp:
            while nxt < NB:
                ex(wloads(nxt))
                nxt += 1
        ex(bfrag_reads(region, 0))
        ex(bfrag_reads(region, 1))
        boff = 0 if is_q else 3
        for t in range(8):
            ex(perms(boff, t))
        ex(wloads(nxt))
        nxt += 1
        for ks in range(16):
            if STAMP == 2 and ks % 4 == 0:
                stamp()
            if ks + 2 < 16:
                ex(bfrag_reads(region, ks + 2))
            for t in range(8):
                for mt in range(3):
                    e(mfma(acc(t, mt), tr(t), xf(ks, mt), acc(t, mt) if ks else 0))
                if ks + 1 < 16:
                    ex(perms((ks + 1 + boff) % NB, t))
                if t == 3 and nxt < 16 and nxt < ks + NB:
                    ex(wloads(nxt))
                    nxt += 1
            if nxt < 16 and nxt <= ks + 1 + NB:
                ex(wloads(nxt))
                nxt += 1
            if extra and ks in extra:
                ex(extra[ks]())

    L.append(Ins('; ======== phase 1: Q projection', 'comment'))
    stamp()
    e(valu('v_and_b32', V(32), 63, V(0)))
    e(valu('v_lshrrev_b32', V(33), 2, V(32)))
    e(valu('v_and_b32', V(34), 3, V(32)))
    e(valu('v_lshlrev_b32', V(34), 4, V(34)))
    e(valu('v_lshl_add_u32', vXS, V(33), 10, V(34)))
    e(valu('v_lshlrev_b32', V(34), 4, vG))
    e(valu('v_lshl_add_u32', vXA, vJ, 6, V(34)))
    e(valu('v_add_u32', vXA, XREG, vXA))

    def xdma(n):
        o = []
        o.append(salu('s_add_u32', sT0, sW, 4 * n))
        o.append(salu('s_mul_i32', sT1, sT0, 43))
        o.append(salu('s_lshr_b32', sT1, sT1, 7))
        o.append(salu('s_mul_i32', sT2, sT1, 3))
        o.append(salu('s_sub_u32', sT2, sT0, sT2))
        o.append(salu('s_lshl_b32', sT0, sT0, 10))
        o.append(salu('s_add_u32', 'm0', sT0, XREG))
        o.append(salu('s_add_u32', sT1, sT1, sB))
        o.append(salu('s_and_b32', sT1, sT1, 15))
        o.append(salu('s_lshl_b32', sT1, sT1, 6))
        o.append(salu('s_lshl_b32', sT2, sT2, 14))
        o.append(salu('s_add_u32', sT1, sT1, sT2))
        o.append(salu('s_add_u32', sT1, sT1, sX[0]))
        o.append(dma(vXS, SRD_X, sT1, 0, tag=f'X{n // 3}'))
        return o
    wl1, _ = gemm_phase(L, True, None)
    for n in range(3):
        ex(xdma(n))
    ex(wl1(0))
    for n in range(3, 12):
        ex(xdma(n))
    ex(wl1(1))
    e(wait_vm_tag('X0'))
    e(barrier())
    if STAMP == 2:
        stamp()
    Q.allow(28)
    P1START = int(os.environ.get('P1START', '2'))
    P1PER = int(os.environ.get('P1PER', '0'))
    P1LATE = int(os.environ.get('P1LATE', '4'))
    P1LS = int(os.environ.get('P1LS', '9'))
    extra = {ks: (lambda n=(P1LATE if ks >= P1LS else P1PER): Q.pop(n)) for ks in range(P1START, 16)}
    gemm(True, XREG, extra, pre_issued=2, ramp=True)

    stamp()
    L.append(Ins('; ======== Q fragments', 'comment'))
    n = 0
    for qt in range(3):
        for s in range(4):
            for p in range(4):
                a0 = V(208 + (n % 8) * 2)
                a1 = V(209 + (n % 8) * 2)
                n += 1
                e(valu('v_accvgpr_read_b32', a0, A(acc(2 * p, qt)[1] + s)))
                e(valu('v_accvgpr_read_b32', a1, A(acc(2 * p + 1, qt)[1] + s)))
                e(valu('v_mul_f32', a0, sC, a0))
                e(valu('v_mul_f32', a1, sC, a1))
                e(valu('v_cvt_pk_bf16_f32', V(qf(qt, s)[1] + p), a0, a1))
    for r in range(4):
        e(valu('v_mov_b32', V(ONES[1] + r), 0x3f803f80))

    def kaddr(c):
        return [valu('v_add_u32', vKA[s], (c % 5) * 32768, vKB[s]) for s in range(4)]

    def vaddr(c):
        return [valu('v_add_u32', vVA[d], (c % 5) * 32768 + 16384, vVB[d]) for d in range(8)]

    def kreads():
        return [ds_read('ds_read_b128', kf(kt, s), vKA[s], kt * 4096) for kt in range(4) for s in range(4)]

    def vreads():
        o = []
        for ks in range(2):
            for dt in range(8):
                for hf in range(2):
                    o.append(ds_read('ds_read_b64_tr_b16', A(vf(dt, ks)[1] + 2 * hf, 2), vVA[dt], ks * 8192 + hf * 4096))
        return o

    def qk_mfmas(par, first):
        o = []
        for kt in range(4):
            for s in range(4):
                for qt in range(3):
                    C = sreg(par, kt, qt) if s else (0 if first else negm(qt))
                    o.append(mfma(sreg(par, kt, qt), kf(kt, s), qf(qt, s), C))
        return o

    def exp_ops(par):
        o = []
        for kt in range(4):
            for qt in range(3):
                b = sreg(par, kt, qt)[1]
                for r in range(4):
                    o.append(valu('v_exp_f32', V(b + r), V(b + r)))
                pb = pf(kt // 2, qt)[1] + (kt & 1) * 2
                o.append(valu('v_cvt_pk_bf16_f32', V(pb), V(b), V(b + 1)))
                o.append(valu('v_cvt_pk_bf16_f32', V(pb + 1), V(b + 2), V(b + 3)))
        return o

    def pv_mfmas(first=False):
        o = []
        for ks in range(2):
            z = first and ks == 0
            for dt in range(8):
                for qt in range(3):
                    o.append(mfma(oacc(dt, qt), vf(dt, ks), pf(ks, qt), 0 if z else oacc(dt, qt)))
            for qt in range(3):
                o.append(mfma(lacc(qt), ONES, pf(ks, qt), 0 if z else lacc(qt)))
        return o

    def max_all(par):
        o = []
        b = SB[par]
        o.append(valu('v_max3_f32', vTMP[0], V(b), V(b + 1), V(b + 2)))
        for i in range(3, 47, 2):
            o.append(valu('v_max3_f32', vTMP[0], vTMP[0], V(b + i), V(b + i + 1)))
        o.append(valu('v_max_f32', vTMP[0], vTMP[0], V(b + 47)))
        return o

    def rebase(par, first):
        o = []
        o.append(valu('v_and_b32', vT[6], 63, V(0)))
        o.append(valu('v_xor_b32', vT[4], 16, vT[6]))
        o.append(valu('v_lshlrev_b32', vT[4], 2, vT[4]))
        o.append(valu('v_xor_b32', vT[5], 32, vT[6]))
        o.append(valu('v_lshlrev_b32', vT[5], 2, vT[5]))
        for qt in range(3):
            m = vT[qt]
            vals = [V(sreg(par, kt, qt)[1] + r) for kt in range(4) for r in range(4)]
            o.append(valu('v_max3_f32', m, vals[0], vals[1], vals[2]))
            for i in range(3, 15, 2):
                o.append(valu('v_max3_f32', m, m, vals[i], vals[i + 1]))
            o.append(valu('v_max_f32', m, m, vals[15]))
            o.append(ds_bperm(vT[7], vT[4], m))
            o.append(valu('v_max_f32', m, m, vT[7]))
            o.append(ds_bperm(vT[7], vT[5], m))
            o.append(valu('v_max_f32', m, m, vT[7]))
            if not first:
                o.append(valu('v_max_f32', m, 0, m))
            for v in vals:
                o.append(valu('v_sub_f32', v, v, m))
            if first:
                for r in range(4):
                    o.append(valu('v_sub_f32', V(negm(qt)[1] + r), 0, m))
            else:
                for r in range(4):
                    o.append(valu('v_sub_f32', V(negm(qt)[1] + r), V(negm(qt)[1] + r), m))
                o.append(valu('v_sub_f32', vT[7], 0, m))
                o.append(valu('v_exp_f32', vT[7], vT[7]))
                accs = [A(oacc(dt, qt)[1] + r) for dt in range(8) for r in range(4)] + [A(lacc(qt)[1] + r) for r in range(4)]
                for a_ in accs:
                    o.append(valu('v_accvgpr_read_b32', vT[6], a_))
                    o.append(valu('v_mul_f32', vT[6], vT[6], vT[7]))
                    o.append(valu('v_accvgpr_write_b32', a_, vT[6]))
        return o

    L.append(Ins('; ======== attention prologue', 'comment'))
    ex(kaddr(0))
    ex(Q.ensure(4))
    e(wait_vm_tag('K0'))
    e(wait_all(vm=False, lgkm=True))
    e(barrier())
    Q.allow(40)
    EV = int(os.environ.get('EV', '11'))
    ex(kreads())
    ex(sprinkle(qk_mfmas(0, True), Q, 8))
    ex(rebase(0, True))

    wl4 = None
    for c in range(8):
        par = c & 1
        if STAMP == 1 or c == 0:
            stamp()
        L.append(Ins(f'; ======== attention chunk {c}', 'comment'))
        ex(Q.ensure(min(64, 8 * c + 12)))
        if c < 7:
            ex(kaddr(c + 1))
            e(wait_vm_tag(f'K{c + 1}'))
        ex(vaddr(c))
        e(wait_vm_tag(f'V{c}'))
        e(wait_all(vm=False, lgkm=True))
        e(barrier())
        Q.allow(8 * (c + 5))
        body0 = len(L)
        pv = pv_mfmas(c == 0)
        eo = exp_ops(par)
        vr = vreads()
        if c < 7:
            kr = kreads()
            qk = qk_mfmas(par ^ 1, False)
            mx = max_all(par ^ 1)
            ex(kr[:6])
            ex(interleave(qk[:24], kr[6:] + interleave(eo[:36], vr[:16])))
            ex(interleave(pv[:27], eo[36:]))
            ex(interleave(qk[24:], interleave(vr[16:], mx[:11])))
        else:
            ex(interleave(eo[:36], vr[:16]))
            ex(interleave(pv[:27], interleave(eo[36:], vr[16:])))
        if c == 6:
            e(salu('s_lshl_b32', sT0, sH, 19))
            e(salu('s_lshl_b32', sT1, sW, 8))
            e(salu('s_add_u32', sWBASE, sT0, sT1))
            wl4, _ = gemm_phase(L, False, None)
            ex(wl4(0))
            ex(wl4(1))
        if c < 7:
            ex(interleave(pv[27:], mx[11:], start=6))
            L[body0:] = sprinkle(L[body0:], Q, EV)
            e(Ins(f"v_cmp_lt_f32 vcc, {fmt(sTH)}, {fmt(vTMP[0])}", 'valu', regs(vTMP[0]) + regs(sTH), ['vcc'], {'op': 'v_cmp'}))
            e(nop(3))
            e(Ins(f's_cbranch_vccnz L_slow{c}', 'branch', ['vcc']))
            e(Ins(f'L_back{c}:', 'label'))
            sp = rebase(par ^ 1, False)
            sp.append(nop(7))
            sp.append(nop(7))
            sp.append(Ins(f's_branch L_back{c}', 'branch'))
            slow_paths.append((f'L_slow{c}', sp))
        else:
            ex(pv[27:])

    stamp()
    L.append(Ins('; ======== O normalise -> LDS', 'comment'))
    ex(wl4(2))
    ex(wl4(3))
    ex(wl4(4))
    nT = [V(32 + i) for i in range(8)]
    e(valu('v_lshrrev_b32', nT[3], 1, vG))
    e(valu('v_and_b32', nT[4], 1, vG))
    e(valu('v_lshlrev_b32', nT[4], 3, nT[4]))
    e(valu('v_add_u32', nT[4], nT[4], vBB))
    e(salu('s_lshl_b32', sT0, sW, 8))
    e(valu('v_add_u32', nT[4], sT0, nT[4]))
    OW = [V(48 + d) for d in range(8)]
    for dt in range(8):
        e(valu('v_add_u32', nT[5], 2 * dt, nT[3]))
        e(valu('v_xor_b32', nT[5], nT[5], vBF))
        e(valu('v_lshl_add_u32', OW[dt], nT[5], 4, nT[4]))
    for qt in range(3):
        e(valu('v_accvgpr_read_b32', nT[6], A(lacc(qt)[1])))
        e(valu('v_rcp_f32', nT[6], nT[6]))
        for dt in range(8):
            b = 128 + ((qt * 8 + dt) % 5) * 6
            for r in range(4):
                e(valu('v_accvgpr_read_b32', V(b + r), A(oacc(dt, qt)[1] + r)))
                e(valu('v_mul_f32', V(b + r), V(b + r), nT[6]))
            e(valu('v_cvt_pk_bf16_f32', V(b + 4), V(b), V(b + 1)))
            e(valu('v_cvt_pk_bf16_f32', V(b + 5), V(b + 2), V(b + 3)))
            e(ds_write('ds_write_b64', OW[dt], V(b + 4, 2), qt * 16384))
    e(wait_all(vm=False, lgkm=True))
    e(barrier())
    stamp()
    L.append(Ins('; ======== phase 4: output projection', 'comment'))
    gemm(False, 0, None, pre_issued=5)

    stamp()
    L.append(Ins('; ======== store partials', 'comment'))
    e(valu('v_and_b32', vBA[0], 63, V(0)))
    e(valu('v_lshlrev_b32', vBA[0], 4, vBA[0]))
    for mt in range(3):
        for r in range(4):
            i = mt * 4 + r
            b = 64 + (i % 4) * 12
            for t in range(8):
                e(valu('v_accvgpr_read_b32', V(b + t), A(acc(t, mt)[1] + r)))
            for p in range(4):
                e(valu('v_cvt_pk_bf16_f32', V(b + 8 + p), V(b + 2 * p), V(b + 2 * p + 1)))
            if i and i % 4 == 0:
                e(salu('s_add_u32', sOUT, sOUT, 4096))
            e(buf_store(V(b + 8, 4), vBA[0], SRD_WS, sOUT, (i % 4) * 1024, flags=os.environ.get('PSTFLAGS', 'sc0 sc1')))
    if INK:
        L.append(Ins('; ======== in-kernel reduction over the 8 kv-head workgroups of this (blk, b)', 'comment'))
        SRD_D, SRD_O = S(44, 4), S(48, 4)
        e(salu('s_mov_b64', S(44, 2), S(38, 2)))
        e(salu('s_mov_b32', S(46), 256))
        e(salu('s_mov_b32', S(47), 0x20000))
        e(salu('s_mov_b64', S(48, 2), S(36, 2)))
        e(salu('s_mov_b32', S(50), 16 * 48 * 1024 * 2))
        e(salu('s_mov_b32', S(51), 0x20000))
        sG = S(74)
        e(salu('s_lshl_b32', sG, sBLK, 4))
        e(salu('s_add_u32', sG, sG, sB))
        e(salu('s_lshl_b32', sT2, sG, 2))
        e(valu('v_mov_b32', V(64), 0))
        e(valu('v_mov_b32', V(65), 1))
        e(wait_all())
        e(barrier())
        e(Ins(f's_cmp_lg_u32 {fmt(sW)}, 0', 'salu', regs(sW), ['scc']))
        e(Ins('s_cbranch_scc1 L_rdy', 'branch', ['scc']))
        e(Ins('s_mov_b64 exec, 1', 'salu', [], ['exec']))
        e(Ins(f'buffer_atomic_add v65, v64, s[44:47], {fmt(sT2)} offen sc1', 'vstore', ['v64', 'v65', 's44', 's45', 's46', 's47'] + regs(sT2), [], {'tag': None, 'data': ['v65']}))
        e(salu('s_mov_b32', sT1, 0))
        e(Ins('L_poll:', 'label'))
        e(Ins(f'buffer_load_dword v66, v64, s[44:47], {fmt(sT2)} offen sc0 sc1', 'other'))
        e(Ins('s_waitcnt vmcnt(0)', 'other'))
        e(Ins('v_readfirstlane_b32 s75, v66', 'other'))
        e(Ins('s_nop 3', 'other'))
        e(Ins('s_cmp_ge_u32 s75, 8', 'other'))
        e(Ins('s_cbranch_scc1 L_polled', 'other'))
        e(Ins('s_sleep 4', 'other'))
        e(Ins(f's_add_u32 {fmt(sT1)}, {fmt(sT1)}, 1', 'other'))
        e(Ins(f's_cmp_lt_u32 {fmt(sT1)}, 40000', 'other'))
        e(Ins('s_cbranch_scc1 L_poll', 'other'))
        e(Ins('L_polled:', 'label'))
        e(Ins('s_mov_b64 exec, -1', 'salu', [], ['exec']))
        e(Ins('L_rdy:', 'label'))
        e(nop(4))
        e(barrier())
        e(valu('v_and_b32', V(64), 63, V(0)))
        e(valu('v_lshlrev_b32', V(64), 4, V(64)))
        e(valu('v_lshlrev_b32', V(65), 6, vG))
        e(valu('v_lshl_add_u32', V(65), vJ, 11, V(65)))
        e(salu('s_mov_b32', S(76), 0xffff0000))
        sI, sW2, sR = S(77), S(78), S(82)
        for rnd in range(2):
            if rnd:
                e(Ins(f's_cmp_ge_u32 {fmt(sW)}, 2', 'salu', regs(sW), ['scc']))
                e(Ins('s_cbranch_scc1 L_exit', 'branch', ['scc']))
            e(salu('s_mul_i32', sI, sH, 6))
            e(salu('s_add_u32', sI, sI, sW))
            if rnd:
                e(salu('s_add_u32', sI, sI, 4))
            e(salu('s_mul_i32', sT0, sG, 8 * 49152))
            e(salu('s_lshl_b32', sT1, sI, 10))
            e(salu('s_add_u32', sT0, sT0, sT1))
            B0 = 72
            for hh in range(8):
                if hh:
                    e(salu('s_add_u32', sT0, sT0, 49152))
                e(buf_load(V(B0 + hh * 4, 4), V(64), SRD_WS, sT0, flags='sc0 sc1'))
            e(salu('s_mul_i32', sW2, sI, 43))
            e(salu('s_lshr_b32', sW2, sW2, 9))
            e(salu('s_mul_i32', sT1, sW2, 12))
            e(salu('s_sub_u32', sT1, sI, sT1))
            e(salu('s_and_b32', sR, sT1, 3))
            e(salu('s_lshr_b32', sT1, sT1, 2))
            e(salu('s_lshl_b32', sT1, sT1, 15))
            e(salu('s_mul_i32', sT2, sB, 48 * 2048))
            e(salu('s_add_u32', sT1, sT1, sT2))
            e(salu('s_lshl_b32', sT2, sBLK, 10))
            e(salu('s_add_u32', sT1, sT1, sT2))
            e(salu('s_lshl_b32', sT2, sW2, 8))
            e(salu('s_add_u32', sT1, sT1, sT2))
            e(salu('s_lshl_b32', sT2, sR, 4))
            e(salu('s_add_u32', sT1, sT1, sT2))
            AC = B0 + 32
            for hh in range(8):
                for i in range(4):
                    src = V(B0 + hh * 4 + i)
                    lo, hi = V(AC + 2 * i), V(AC + 2 * i + 1)
                    if hh == 0:
                        e(valu('v_lshlrev_b32', lo, 16, src))
                        e(valu('v_and_b32', hi, S(76), src))
                    else:
                        t0, t1 = V(AC + 8 + (i & 1) * 2), V(AC + 9 + (i & 1) * 2)
                        e(valu('v_lshlrev_b32', t0, 16, src))
                        e(valu('v_and_b32', t1, S(76), src))
                        e(valu('v_add_f32', lo, lo, t0))
                        e(valu('v_add_f32', hi, hi, t1))
            for p in range(4):
                e(valu('v_cvt_pk_bf16_f32', V(AC + 12 + p), V(AC + 2 * p), V(AC + 2 * p + 1)))
            e(buf_store(V(AC + 12, 4), V(65), SRD_O, sT1))
            e(wait_all())
    if STAMP:
        e(wait_all())
        stamp()
        e(salu('s_mov_b32', S(SRD_WS[1] + 2), 0x10000000))
        e(salu('s_lshl_b32', sT0, S(2), 2))
        e(salu('s_add_u32', sT0, sT0, sW))
        e(salu('s_lshl_b32', sT0, sT0, 7))
        e(salu('s_add_u32', sT0, sT0, 64 << 20))
        e(valu('v_mov_b32', V(1), 0))
        e(valu('v_mov_b32', V(3), 0))
        for i in range(nst[0]):
            e(valu('v_mov_b32', V(2), S(STREGS[i])))
            e(buf_store(V(2, 2), V(1), SRD_WS, sT0, i * 8))
            e(wait_all())
    e(Ins('L_exit:', 'label'))
    e(Ins('s_endpgm', 'other'))
    lines, stats = finalize(L)
    print('main', stats, len(lines), file=sys.stderr)
    for name, sp in slow_paths:
        lines.append(name + ':')
        l2, _ = finalize(sp, entry_pad=True)
        lines += l2
    return lines


def build_reduce():
    L = []
    e = L.append
    e(Ins('s_cmp_ge_u32 s2, 384', 'salu', ['s2'], ['scc']))
    e(Ins('s_cbranch_scc1 R_exit', 'branch', ['scc']))
    e(Ins('s_load_dwordx2 s[4:5], s[0:1], 80', 'smem', [], regs(S(4, 2))))
    e(Ins('s_load_dwordx2 s[6:7], s[0:1], 96', 'smem', [], regs(S(6, 2))))
    e(salu('s_mul_i32', S(20), S(2), 5462))
    e(salu('s_lshr_b32', S(20), S(20), 16))
    e(salu('s_mul_i32', S(21), S(20), 12))
    e(salu('s_sub_u32', S(21), S(2), S(21)))
    e(salu('s_mul_i32', S(26), S(21), 11))
    e(salu('s_lshr_b32', S(26), S(26), 5))
    e(salu('s_mul_i32', S(27), S(26), 3))
    e(salu('s_sub_u32', S(27), S(21), S(27)))
    e(valu('v_lshlrev_b32', V(3), 4, V(0)))
    e(salu('s_mul_i32', S(23), S(20), 8 * 49152))
    e(salu('s_mul_i32', S(28), S(26), 12288))
    e(salu('s_add_u32', S(23), S(23), S(28)))
    e(salu('s_lshl_b32', S(28), S(27), 12))
    e(salu('s_add_u32', S(23), S(23), S(28)))
    e(valu('v_and_b32', V(1), 15, V(0)))
    e(valu('v_bfe_u32', V(2), V(0), 4, 2))
    e(valu('v_lshlrev_b32', V(2), 6, V(2)))
    e(valu('v_lshl_add_u32', V(4), V(1), 11, V(2)))
    e(valu('v_lshrrev_b32', V(2), 6, V(0)))
    e(valu('v_lshl_add_u32', V(4), V(2), 4, V(4)))
    e(salu('s_and_b32', S(24), S(20), 15))
    e(salu('s_mul_i32', S(24), S(24), 48 * 2048))
    e(salu('s_lshr_b32', S(25), S(20), 4))
    e(salu('s_lshl_b32', S(25), S(25), 10))
    e(salu('s_add_u32', S(24), S(24), S(25)))
    e(salu('s_lshl_b32', S(25), S(27), 15))
    e(salu('s_add_u32', S(24), S(24), S(25)))
    e(salu('s_lshl_b32', S(25), S(26), 8))
    e(salu('s_add_u32', S(24), S(24), S(25)))
    e(Ins('s_waitcnt lgkmcnt(0)', 'other'))
    e(salu('s_mov_b64', S(8, 2), S(4, 2)))
    e(salu('s_mov_b32', S(10), 16 * 48 * 1024 * 2))
    e(salu('s_mov_b32', S(11), 0x20000))
    e(salu('s_mov_b64', S(12, 2), S(6, 2)))
    e(salu('s_mov_b32', S(14), 32 * 8 * 48 * 1024))
    e(salu('s_mov_b32', S(15), 0x20000))
    B0 = 8
    for hh in range(8):
        if hh:
            e(salu('s_add_u32', S(23), S(23), 49152))
        e(buf_load(V(B0 + hh * 4, 4), V(3), S(12, 4), S(23), flags=os.environ.get('RLDFLAGS', '')))
    AC = B0 + 32
    e(salu('s_mov_b32', S(30), 0xffff0000))
    for hh in range(8):
        for i in range(4):
            src = V(B0 + hh * 4 + i)
            lo, hi = V(AC + 2 * i), V(AC + 2 * i + 1)
            if hh == 0:
                e(valu('v_lshlrev_b32', lo, 16, src))
                e(valu('v_and_b32', hi, S(30), src))
            else:
                t0, t1 = V(AC + 8 + (i & 1) * 2), V(AC + 9 + (i & 1) * 2)
                e(valu('v_lshlrev_b32', t0, 16, src))
                e(valu('v_and_b32', t1, S(30), src))
                e(valu('v_add_f32', lo, lo, t0))
                e(valu('v_add_f32', hi, hi, t1))
    for p in range(4):
        e(valu('v_cvt_pk_bf16_f32', V(B0 + p), V(AC + 2 * p), V(AC + 2 * p + 1)))
    e(buf_store(V(B0, 4), V(4), S(8, 4), S(24)))
    e(Ins('R_exit:', 'label'))
    e(Ins('s_endpgm', 'other'))
    lines, stats = finalize(L)
    return lines


def kd(name, vgpr, accum, sgpr):
    return f""".amdhsa_kernel {name}
  .amdhsa_next_free_vgpr {vgpr}
  .amdhsa_next_free_sgpr {sgpr}
  .amdhsa_accum_offset {accum}
  .amdhsa_group_segment_fixed_size 0
  .amdhsa_kernarg_size 104
  .amdhsa_user_sgpr_count 2
  .amdhsa_user_sgpr_kernarg_segment_ptr 1
  .amdhsa_system_sgpr_workgroup_id_x 1
.end_amdhsa_kernel
"""


for wg in range(384 + 16):
    assert (wg * 5462) >> 16 == wg // 12
for i in range(48):
    assert (i * 43) >> 7 == i // 3
for i in range(48):
    assert (i * 43) >> 9 == i // 12
for rq in range(12):
    assert (rq * 11) >> 5 == rq // 3

main = build_main()
red = build_reduce()
txt = HDR
if INK:
    txt += '; @launch grid=(256,1,1) block=(256,1,1) lds=163840\n'
else:
    txt += f'; @launch kernel={NAME}_kernel grid=(256,1,1) block=(256,1,1) lds=163840\n'
    txt += '; @launch kernel=reduce_kernel grid=(384,1,1) block=(256,1,1) lds=0\n'
txt += '.amdgcn_target "amdgcn-amd-amdhsa--gfx950"\n.text\n'
txt += f'.globl {NAME}_kernel\n.p2align 8\n.type {NAME}_kernel,@function\n{NAME}_kernel:\n'
txt += '\n'.join(main) + '\n'
if not INK:
    txt += '.globl reduce_kernel\n.p2align 8\n.type reduce_kernel,@function\nreduce_kernel:\n'
    txt += '\n'.join(red) + '\n'
txt += '.section .rodata,"a"\n.p2align 6\n'
txt += kd(f'{NAME}_kernel', 512, 256, 96)
if not INK:
    txt += '.p2align 6\n'
    txt += kd('reduce_kernel', 56, 56, 32)
open(OUT, 'w').write(txt)
print('wrote', OUT, len(txt), file=sys.stderr)
```
